```python
import torch

def _softmax(x, axis=-1):
    return torch.softmax(x, dim=axis)
def _gelu(x):
    return torch.nn.functional.gelu(x, approximate="tanh")
def _silu(x):
    return torch.nn.functional.silu(x)
def _sigmoid(x):
    return torch.sigmoid(x)
def _layernorm(x, axis=-1, eps=1e-5):
    m = x.mean(dim=axis, keepdim=True)
    v = x.var(dim=axis, keepdim=True, unbiased=False)
    return (x - m) / torch.sqrt(v + eps)
def _scatter_add(tgt, idx, src, axis=0):
    return tgt.clone().index_add_(axis, idx, src)
def _segment_sum(src, seg, n):
    out = torch.zeros((n,) + src.shape[1:], dtype=src.dtype)
    return out.index_add_(0, seg, src)
def _pad(x, pw):
    flat = tuple(v for pair in reversed(pw) for v in pair)
    return torch.nn.functional.pad(x, flat)

kernel_name = 'standalone__mha_softmax__near_ridge'

def setup_inputs():

    _w = (lambda a: (lambda t: t.to(torch.bfloat16) if t.is_floating_point() else t)(torch.as_tensor(a)))
    B, H, Sq, Sk, D = 8, 32, 1024, 512, 128
    return {
        "q": _w((lambda *s: torch.randn(*s, dtype=torch.bfloat16) * 0.8)(B, H, Sq, D)),
        "k": _w((lambda *s: torch.randn(*s, dtype=torch.bfloat16) * 0.8)(B, H, Sk, D)),
        "v": _w((lambda *s: torch.randn(*s, dtype=torch.bfloat16) * 0.05)(B, H, Sk, D)),
    }

def reference(q, k, v):
    scale = q.shape[-1] ** -0.5
    scores = torch.einsum("bhqd,bhkd->bhqk", q, k) * scale
    p = _softmax(scores, axis=-1)
    return torch.einsum("bhqk,bhkd->bhqd", p, v)
```

```python
import bisect, collections

class Op:
    __slots__ = ("text","kind","reads","writes","pos","earliest","latest","idx","preds","succs",
                 "asap","alap","done","t","n","units","tag","creads","seq","nlines","prio","cnt_idx")
    def __init__(self, text, kind, reads=(), writes=(), pos=None, earliest=None, latest=None,
                 tag="", creads=(), units=None):
        self.text, self.kind = text, kind
        self.reads, self.writes = list(reads), list(writes)
        self.creads = set(creads)
        self.pos = pos
        self.earliest, self.latest = earliest, latest
        self.preds, self.succs = [], []
        self.done = False
        self.tag = tag
        self.nlines = text.count("\n") + 1
        self.units = units if units is not None else {"E":2,"V":1,"D":1,"G":2,"S":0,"B":0,"M16":0,"M4":0,"M32":0}[kind]
    def is_mfma(self): return self.kind[0] == "M"
    def is_valu(self): return self.kind in ("E","V")

PASSES = {"M4":2, "M16":4, "M32":8}
CYC = {"M4":8, "M16":16, "M32":32}
HOLD = {"M4":4, "M16":8, "M32":8}
WS_D_USE = {2:5, 4:8, 8:12}
WS_D_C_SAME = {2:2, 4:0, 8:0}
WS_D_C_OVL = {2:4, 4:6, 8:10}
WS_C_WAR = {2:1, 4:3, 8:7}

def isreg(r): return r[0] in "va" and r[1:].isdigit()

def edge_req(p, c, typ, reg):
    if not isreg(reg):
        if reg == "m0" and typ == "RAW" and c.kind == "G": return 1, None
        if typ == "RAW" and p.kind == "G": return 0, "vm"
        if typ == "WAR" and p.kind == "D": return 0, "lgkm"
        if typ == "RAW" and p.is_valu() and reg[0] == "s":
            return (5 if c.kind == "G" else 3), None
        return 0, None
    if p.is_mfma():
        ps = PASSES[p.kind]
        if typ in ("RAW","WAW"):
            if c.is_mfma():
                if typ == "RAW" and reg in c.creads:
                    same = (c.kind == p.kind and sorted(c.creads) == sorted(p.writes))
                    return (WS_D_C_SAME if same else WS_D_C_OVL)[ps], None
                if typ == "RAW": return WS_D_USE[ps], None
                return (0 if c.kind == p.kind else WS_D_USE[ps]), None
            return WS_D_USE[ps], None
        else:
            if reg in p.creads and not c.is_mfma(): return WS_C_WAR[ps], None
            if reg in p.creads and c.is_mfma() and c.kind != p.kind: return WS_C_WAR[ps], None
            return 0, None
    if p.kind == "D":
        if typ in ("RAW","WAW"): return 0, "lgkm"
        return 0, None
    if p.kind == "G":
        if typ in ("RAW","WAW"): return 0, "vm"
        return 2, None
    if p.is_valu():
        if typ == "RAW":
            if c.is_mfma(): return 2, None
            if "permlane" in c.text: return 2, None
            if "readfirstlane" in c.text or "readlane" in c.text: return 1, None
            if p.kind == "E" and "permlane" not in p.text: return 1, None
            return 0, None
        return 0, None
    return 0, None

class Sched:
    def __init__(self, ds_lat=10, maxcap=6, margin=0):
        self.ops = []
        self.lastw = {}
        self.readers = collections.defaultdict(list)
        self.ds_lat = ds_lat
        self.maxcap = maxcap
        self.margin = margin
    def add(self, op):
        op.seq = len(self.ops)
        deps = {}
        def dep(p, typ, reg):
            if p is op: return
            ws, wt = edge_req(p, op, typ, reg)
            o = deps.get(p, (0, None))
            deps[p] = (max(o[0], ws), wt or o[1])
        for r in op.reads:
            if r in self.lastw: dep(self.lastw[r], "RAW", r)
        for r in op.writes:
            if r in self.lastw: dep(self.lastw[r], "WAW", r)
            for p in self.readers[r]: dep(p, "WAR", r)
        for r in op.reads: self.readers[r].append(op)
        for r in op.writes:
            self.lastw[r] = op
            self.readers[r] = [op] if r in op.reads else []
        for p,(ws,wt) in deps.items():
            op.preds.append((p,ws,wt)); p.succs.append((op,ws,wt))
        self.ops.append(op)
        return op

    def run(self):
        mf = sorted([o for o in self.ops if o.is_mfma()], key=lambda o:(o.pos,o.seq))
        for i,o in enumerate(mf): o.idx = i
        self.mf = mf
        N = len(mf)
        fill = [o for o in self.ops if not o.is_mfma()]
        for o in mf:
            for p,ws,wt in o.preds:
                if p.is_mfma() and p.idx >= o.idx:
                    raise Exception(f"MFMA order violates dep: {p.text} -> {o.text}")
        def ref(x):
            if x is None: return None
            if isinstance(x, tuple): return x[0].idx + x[1]
            return x
        def gaps_for(p, ws):
            need = 4*(ws+1)
            if ws == 0: return 0
            t = 0; i = p.idx
            while True:
                if t + HOLD[mf[i].kind] >= need or i+1 >= N: return i - p.idx
                t += CYC[mf[i].kind]; i += 1
        for o in self.ops:
            if o.is_mfma(): o.asap = o.idx; continue
            a = -1
            for p,ws,wt in o.preds:
                if p.is_mfma(): a = max(a, p.idx + gaps_for(p, ws))
                else: a = max(a, p.asap)
            e = ref(o.earliest)
            if e is not None: a = max(a, min(e, N-1))
            o.asap = a
        for o in reversed(self.ops):
            if o.is_mfma(): o.alap = o.idx; continue
            l = float(N-1)
            for c,ws,wt in o.succs:
                if c.is_mfma():
                    x = c.idx - 1
                    if ws >= 1: x -= 1
                    if wt == "lgkm": x -= self.ds_lat
                    if wt == "vm": x -= 2
                else:
                    x = c.alap
                    if wt == "lgkm": x -= self.ds_lat
                    elif wt == "vm": x -= 1
                    elif c.kind in ("G","D","S","B") : x -= 1
                    elif ws >= 1: x -= 1
                    else: x -= 0.5*max(o.units,0.0)
                l = min(l, x)
            e = ref(o.latest)
            if e is not None: l = min(l, e)
            o.prio = l
            o.alap = l
        for o in self.ops:
            if not o.is_mfma():
                o.alap = max(o.alap, o.asap)
        out = []
        self.out = out
        st = dict(t=0, n=0, pipe=0, vfree=0, lastvalu=False)
        tl = dict(t=0)
        dsq = []; vmq = []
        cov = dict(lgkm=0, vm=0)
        stats = collections.Counter()
        gapmark = []
        def emit_raw(text, op=None, kind="S"):
            t = st["t"]
            if kind[0] == "M":
                t = max(t, st["pipe"], st["vfree"])
                st["pipe"] = t + CYC[kind]; st["vfree"] = t + HOLD[kind]; st["t"] = t + 4; st["lastvalu"] = False
            elif kind in ("E","V"):
                t = max(t, st["vfree"]); d = 8 if kind == "E" else 4
                st["t"] = t + d; st["vfree"] = t + d; st["lastvalu"] = True
            elif kind in ("D","G"):
                t = max(t, st["vfree"])
                if st["lastvalu"]: t += 8; stats["mem_after_valu"] += 1
                d = 4 if kind == "D" else 8
                st["t"] = t + d; st["vfree"] = t + d; st["lastvalu"] = False
            else:
                nl = text.count("\n") + 1
                st["t"] = t + 4*nl + (12 if kind == "B" else 0)
            if op is not None:
                op.t = t; op.n = len(out); op.done = True
                if kind == "D": op.cnt_idx = len(dsq); dsq.append(op)
                if kind == "G": op.cnt_idx = len(vmq); vmq.append(op)
            out.append((text, op, kind))
        def states_since(p):
            if not p.is_mfma():
                s = 0
                for (text,op,kind) in out[p.n+1:]:
                    if text.startswith("s_nop"): s += int(text.split()[1]) + 1
                    else: s += text.count("\n")+1
                    if s > 24: break
                return s
            t = 4; pipe = CYC[p.kind]
            for (text,op,kind) in out[p.n+1:]:
                if kind[0] == "M":
                    t = max(t, pipe); pipe = t + CYC[kind]; t += 4
                elif text.startswith("s_nop"): t += 4*(int(text.split()[1]) + 1)
                else: t += 4*(text.count("\n")+1)
                if t > 120: break
            return t//4 - 1
        def need_ws(o):
            k = 0
            for p,ws,wt in o.preds:
                if ws > 0:
                    m = self.margin if p.is_mfma() and ws >= 5 else 0
                    k = max(k, ws + m - states_since(p))
            return k
        def need_wait(o):
            lg = vm = None
            for p,ws,wt in o.preds:
                if wt == "lgkm" and p.cnt_idx >= cov["lgkm"]: lg = max(lg or 0, p.cnt_idx+1)
                if wt == "vm" and p.cnt_idx >= cov["vm"]: vm = max(vm or 0, p.cnt_idx+1)
            return lg, vm
        def emit_wait(lg, vm):
            parts = []
            if vm is not None:
                n = min(len(vmq) - vm, 63); parts.append(f"vmcnt({n})"); cov["vm"] = len(vmq) - n
            if lg is not None:
                k = lg
                while k < len(dsq) and st["t"] - dsq[k].t >= 16*self.ds_lat + 32: k += 1
                if st["t"] - dsq[lg-1].t < 16*self.ds_lat*0.6: stats["short_ds"] += 1
                n = min(len(dsq) - k, 15); parts.append(f"lgkmcnt({n})"); cov["lgkm"] = len(dsq) - n
            emit_raw("s_waitcnt " + " ".join(parts))
            stats["waits"] += 1
        def emit(o):
            lg, vm = need_wait(o)
            if lg is not None or vm is not None: emit_wait(lg, vm); stats["late_wait"] += 1
            k = need_ws(o)
            if k > 0:
                emit_raw(f"s_nop {k-1}"); st["t"] += 4*(k-1); stats["nop_states"] += k
            emit_raw(o.text, o, o.kind)
        def force(o):
            if o.done: return
            for p,ws,wt in sorted(o.preds, key=lambda x:x[0].seq):
                if not p.done:
                    if p.is_mfma(): raise Exception(f"infeasible: {o.text} needs MFMA {p.text} idx {p.idx}")
                    force(p)
            emit(o)
            stats["forced"] += 1
        pend = sorted(fill, key=lambda o:(o.asap,o.seq))
        pi = 0
        active = []
        byalap = sorted(fill, key=lambda o:o.alap)
        alaps = [o.alap for o in byalap]
        lo = 0
        capg = [ (CYC[m.kind]-HOLD[m.kind])//4 for m in mf ]
        cum = [0]
        for c in capg: cum.append(cum[-1]+c)
        def ready(o, i):
            return all(p.done for p,ws,wt in o.preds)
        for i in range(-1, N):
            if i >= 0:
                m = mf[i]
                for p,ws,wt in sorted(m.preds, key=lambda x:x[0].seq):
                    if not p.done: force(p)
                gapmark.append(len(out))
                emit(m)
            while pi < len(pend) and pend[pi].asap <= i:
                active.append(pend[pi]); pi += 1
            active = [o for o in active if not o.done]
            active.sort(key=lambda o:(o.prio,o.seq))
            if i == -1 or i == N-1:
                for o in sorted(active, key=lambda o:o.seq):
                    if i == N-1 or o.alap < 0: force(o)
                continue
            while lo < len(byalap) and byalap[lo].done: lo += 1
            need = 0; dem = 0
            for k in range(lo, len(byalap)):
                o = byalap[k]
                if o.alap > i + 140: break
                if o.done: continue
                dem += o.units
                d = min(int(o.alap), N-1)
                c = cum[d+1] - cum[i+1] if d > i else 0
                need = max(need, dem - c)
            cap = max(capg[i], min(need, self.maxcap))
            used = 0
            sfree = True
            nxt = mf[i+1]
            if all(p.done for p,ws,wt in nxt.preds if wt):
                lg, vm = need_wait(nxt)
                if lg is not None or vm is not None:
                    emit_wait(lg, vm); sfree = False
            for o in active:
                if o.kind in ("S","B") and not o.done and ready(o,i) and need_ws(o) == 0:
                    lg, vm = need_wait(o)
                    if sfree and (lg is not None or vm is not None):
                        emit_wait(lg, vm); sfree = False; continue
                    if sfree or o.alap < i+1:
                        if o.units and used + o.units > cap and o.alap >= i+1: continue
                        if not sfree: used += 1
                        emit(o); used += o.units; sfree = False
            cand = [o for o in active if o.kind not in ("S","B")]
            valu_started = False
            def pick():
                r = [o for o in cand if not o.done and ready(o,i) and need_ws(o) == 0
                     and not (valu_started and o.kind in ("D","G") and o.alap >= i+1)]
                return r
            r = pick()
            chosen = []; u = used
            for o in r:
                if u + o.units <= cap or o.alap < i+1:
                    chosen.append(o); u += o.units
            if u < cap and len(chosen) == 1 and chosen[0].units == 1 and chosen[0].alap >= i+2 and cap - used == 2:
                two = [o for o in r if o.units == 2]
                follow = any((not c.is_mfma()) and c.kind == "V" and ws == 0 and c.asap <= i and
                             all(p.done or p is chosen[0] for p,_,_ in c.preds) for c,ws,wt in chosen[0].succs)
                if two and not follow: chosen = [two[0]]
            for o in chosen:
                if o.kind in ("D","G"):
                    lg, vm = need_wait(o)
                    emit(o); used += o.units
            valu_started = True
            for o in chosen:
                if o.kind not in ("D","G") and need_ws(o) == 0:
                    emit(o); used += o.units
            while True:
                r = [o for o in pick() if used + o.units <= cap or o.alap < i+1]
                if not r: break
                emit(r[0]); used += r[0].units
        assert all(o.done for o in self.ops)
        self.gapmark = gapmark
        self.stats = stats
        self.total = st["t"]
        return out
```

```python
def slow_path(L):
    vQ, sQ, sK, sV, sO = L["vQ"], L["sQ"], L["sK"], L["sV"], L["sO"]
    AHI, ALO, ONES = L["AHI"], L["ALO"], L["ONES"]
    sFail = L["sFail"]
    def rng(regs):
        p = regs[0][0]; a = int(regs[0][1:]); return f"{p}[{a}:{a+len(regs)-1}]"
    ahi, alo, ones = rng(AHI), rng(ALO), rng(ONES)
    o = []
    e = o.append
    e(f"s_cmp_eq_u64 {sFail}, 0")
    e("s_cbranch_scc1 L_end")
    e("s_waitcnt vmcnt(0) lgkmcnt(0)")
    e("s_mov_b32 s6, 0x4000000")
    e("s_mov_b32 s10, 0x2000000")
    e("s_mov_b32 s14, 0x2000000")
    e("v_mbcnt_lo_u32_b32 v200, -1, 0")
    e("v_mbcnt_hi_u32_b32 v200, -1, v200")
    e("v_lshrrev_b32_e32 v201, 4, v200")
    e("v_bfe_u32 v202, v200, 2, 2")
    e("v_and_b32_e32 v203, 3, v200")
    e("v_lshlrev_b32_e32 v204, 10, v201")
    e("v_lshl_add_u32 v204, v202, 4, v204")
    e("v_lshl_add_u32 v204, v203, 1, v204")
    e(f"v_and_b32_e32 {vQ}, 15, v200")
    e(f"v_lshlrev_b32_e32 {vQ}, 8, {vQ}")
    e(f"v_lshl_add_u32 {vQ}, v201, 4, {vQ}")
    e("s_mov_b32 s40, 0")
    e("L_sl_item:")
    e("s_lshr_b32 s41, s40, 2")
    e("s_and_b32 s42, s40, 3")
    e(f"s_lshl_b32 s43, s41, {18+L['C'].HS}")
    e("s_add_u32 s43, s43, s38")
    e("s_lshl_b32 s42, s42, 12")
    e("s_add_u32 s43, s43, s42")
    e(f"s_lshl_b32 s44, s41, {17+L['C'].HS}")
    e("s_add_u32 s44, s44, s39")
    for ks in range(4):
        e(f"buffer_load_dwordx4 v[{64+4*ks}:{67+4*ks}], {vQ}, {sQ}, s43 offen offset:{64*ks}")
    e("s_waitcnt vmcnt(0)")
    for i in range(8):
        e(f"v_mfma_f32_4x4x4_16b_bf16 v[80:83], {ahi}, v[{64+2*i}:{65+2*i}], 0")
        e("s_nop 3")
        e(f"v_mfma_f32_4x4x4_16b_bf16 v[80:83], {alo}, v[{64+2*i}:{65+2*i}], v[80:83]")
        e("s_nop 7")
        e(f"v_cvt_pk_bf16_f32 v{128+2*i}, v80, v81")
        e(f"v_cvt_pk_bf16_f32 v{129+2*i}, v82, v83")
    e("v_mov_b32_e32 v96, 0xff800000")
    e("s_mov_b32 s45, s44")
    e("s_mov_b32 s46, 32")
    e("L_sl_max:")
    for ks in range(4):
        e(f"buffer_load_dwordx4 v[{64+4*ks}:{67+4*ks}], {vQ}, {sK}, s45 offen offset:{64*ks}")
    e("s_waitcnt vmcnt(0)")
    for ks in range(4):
        e(f"v_mfma_f32_16x16x32_bf16 v[80:83], v[{64+4*ks}:{67+4*ks}], v[{128+4*ks}:{131+4*ks}], {'0' if ks==0 else 'v[80:83]'}")
    e("s_nop 9")
    e("v_max3_f32 v96, v96, v80, v81")
    e("v_max3_f32 v96, v96, v82, v83")
    e("s_add_u32 s45, s45, 4096")
    e("s_sub_u32 s46, s46, 1")
    e("s_cmp_lg_u32 s46, 0")
    e("s_cbranch_scc1 L_sl_max")
    e("v_mov_b32_e32 v97, v96")
    e("s_nop 1")
    e("v_permlane32_swap_b32_e32 v96, v97")
    e("s_nop 1")
    e("v_max_f32_e32 v96, v96, v97")
    e("v_mov_b32_e32 v97, v96")
    e("s_nop 1")
    e("v_permlane16_swap_b32_e32 v96, v97")
    e("s_nop 1")
    for r in range(4): e(f"v_min_f32_e64 v{100+r}, -v96, -v97")
    for r in range(36): e(f"v_mov_b32_e32 v{r}, 0")
    e("s_mov_b32 s45, s44")
    e("s_mov_b32 s46, 16")
    e("L_sl_acc:")
    e("s_add_u32 s47, s45, 4096")
    for t in range(2):
        so = "s45" if t == 0 else "s47"
        for ks in range(4):
            e(f"buffer_load_dwordx4 v[{64+4*ks}:{67+4*ks}], {vQ}, {sK}, {so} offen offset:{64*ks}")
        e("s_waitcnt vmcnt(0)")
        for ks in range(4):
            e(f"v_mfma_f32_16x16x32_bf16 v[80:83], v[{64+4*ks}:{67+4*ks}], v[{128+4*ks}:{131+4*ks}], {'v[100:103]' if ks==0 else 'v[80:83]'}")
        e("s_nop 9")
        for r in range(4): e(f"v_exp_f32_e32 v{80+r}, v{80+r}")
        e("s_nop 1")
        e(f"v_cvt_pk_bf16_f32 v{88+2*t}, v80, v81")
        e(f"v_cvt_pk_bf16_f32 v{89+2*t}, v82, v83")
    e("s_nop 1")
    e(f"v_mfma_f32_16x16x32_bf16 v[32:35], {ones}, v[88:91], v[32:35]")
    for db in range(8):
        j, u = db >> 1, db & 1
        for t in range(2):
            so = "s45" if t == 0 else "s47"
            for rho in range(4):
                e(f"buffer_load_ushort v{64+4*t+rho}, v204, {sV}, {so} offen offset:{rho*256 + 64*j + 8*u}")
        e("s_waitcnt vmcnt(0)")
        for h in range(4):
            e(f"v_lshl_or_b32 v{72+h}, v{65+2*h}, 16, v{64+2*h}")
        e("s_nop 1")
        e(f"v_mfma_f32_16x16x32_bf16 v[{4*db}:{4*db+3}], v[72:75], v[88:91], v[{4*db}:{4*db+3}]")
    e("s_add_u32 s45, s45, 8192")
    e("s_sub_u32 s46, s46, 1")
    e("s_cmp_lg_u32 s46, 0")
    e("s_cbranch_scc1 L_sl_acc")
    e("s_nop 9")
    e("v_rcp_f32_e32 v36, v32")
    e("s_nop 1")
    for r in range(32): e(f"v_mul_f32_e32 v{r}, v36, v{r}")
    for j in range(4):
        for h in range(4): e(f"v_cvt_pk_bf16_f32 v{40+4*j+h}, v{8*j+2*h}, v{8*j+2*h+1}")
        e(f"buffer_store_dwordx4 v[{40+4*j}:{43+4*j}], {vQ}, {sO}, s43 offen offset:{64*j}")
    e("s_waitcnt vmcnt(0)")
    e("s_add_u32 s40, s40, 1")
    e("s_cmp_lt_u32 s40, 16")
    e("s_cbranch_scc1 L_sl_item")
    return "".join((x if x.endswith(":") else "    " + x) + "\n" for x in o)
```

```python
import sys, struct, math, argparse
from sched import Op, Sched

KNAME = "standalone__mha_softmax__near_ridge_kernel"

def f2u(x): return struct.unpack("<I", struct.pack("<f", x))[0]
def bf16_rne(x):
    u = f2u(x); u = (u + 0x7fff + ((u >> 16) & 1)) >> 16
    return u
def bf2f(h): return struct.unpack("<f", struct.pack("<I", h << 16))[0]

class Cfg:
    LAG = 5; NS = 4; NP = 2; DSLAT = 10; MAXCAP = 6; MARGIN = 1
    KPAD = 32; VPAD = 8
    USE_M0 = True
    NPASS = 4
    QNT = ""; ONT = ""; KVNT = ""
    STAMP = False
    ROLL = True
    PK = False
    THR = 2.0**40
    FORCE_SLOW = False

def vr(a, n=1): return [f"v{a+i}" for i in range(n)]
def ar(a, n=1): return [f"a{a+i}" for i in range(n)]
def rng(regs):
    p = regs[0][0]; a = int(regs[0][1:])
    return regs[0] if len(regs) == 1 else f"{p}[{a}:{a+len(regs)-1}]"

def generate(cfg):
    C = cfg
    KB = 1024 + C.KPAD; VB = 1024 + C.VPAD
    KSLOT = 16*KB; VSLOT = 16*VB; VS = 4*KSLOT
    LDS = VS + 4*VSLOT
    O  = lambda qb, db: vr(qb*32 + db*4, 4)
    Qp = lambda qb, ks: vr(128 + qb*16 + ks*4, 4)
    Cm = lambda qb: vr(192 + qb*4, 4)
    SB = 208; PB = SB + 4*C.NS
    St = lambda n: vr(SB + (n % C.NS)*4, 4)
    Pb = lambda ph, ks: vr(PB + (ph % C.NP)*8 + ks*4, 4)
    MISC = PB + 8*C.NP
    assert MISC <= 248
    TMP = vr(248, 4)
    vK, vV, vD, vQ = "v252", "v253", "v254", "v255"
    Kf = lambda kb, ks: ar(kb*16 + ks*4, 4)
    Vf = lambda db, ks: ar(64 + db*8 + ks*4, 4)
    Qr = lambda qb, ks: ar(128 + qb*16 + ks*4, 4)
    Lq = lambda qb: ar(192 + qb*4, 4)
    ONES = ar(208, 4); AHI = ar(212, 2); ALO = ar(214, 2)
    sQ, sK, sV, sO = "s[4:7]", "s[8:11]", "s[12:15]", "s[16:19]"
    sKV, sQo, sOo, sWK, sWV, sPass, sThr = "s20", "s21", "s22", "s23", "s24", "s25", "s26"
    sFail = "s[28:29]"; sT = ["s[30:31]", "s[32:33]"]
    c = math.log2(math.e) / math.sqrt(128.0)
    chi = bf16_rne(c); clo = bf16_rne(c - bf2f(chi))

    S = Sched(ds_lat=C.DSLAT, maxcap=C.MAXCAP, margin=C.MARGIN)
    A = S.add
    NSTEP = 8*C.NPASS
    Tm = {}; Gm = {}
    def m16(D, a, b, c_, pos, tag=""):
        cs = "0" if c_ is None else rng(c_)
        return A(Op(f"v_mfma_f32_16x16x32_bf16 {rng(D)}, {rng(a)}, {rng(b)}, {cs}", "M16",
                    reads=a+b+(c_ or []), writes=D, pos=pos, creads=(c_ or []), tag=tag))
    def m4(D, a, b, c_, pos):
        cs = "0" if c_ is None else rng(c_)
        return A(Op(f"v_mfma_f32_4x4x4_16b_bf16 {rng(D)}, {rng(a)}, {rng(b)}, {cs}", "M4",
                    reads=a+b+(c_ or []), writes=D, pos=pos, creads=(c_ or [])))
    def V(text, r, w, kind="V", **kw): return A(Op(text, kind, reads=r, writes=w, **kw))

    class Later:
        def __init__(s, d, k): s.d, s.k = d, k
        @property
        def idx(s):
            k = s.k
            while k not in s.d: k -= 1
            return s.d[k].idx
    def atT(n, off=0): return (Later(Tm, n), off)

    def dma(sig, which, j, earliest=None, latest=None):
        slot = sig % 4
        if which == "K": base, m0imm, srd = sWK, slot*KSLOT + j*C.KPAD, sK
        else:            base, m0imm, srd = sWV, slot*VSLOT + j*C.VPAD, sV
        e2 = (earliest[0], earliest[1]-2) if isinstance(earliest, tuple) else earliest
        A(Op(f"s_add_u32 m0, {base}, {m0imm}", "S", reads=[], writes=["m0"], earliest=e2))
        off = f" offset:{j*1024}" if j else ""
        return A(Op(f"buffer_load_dwordx4 {vD}, {srd}, {sKV} offen{off}{C.KVNT} lds", "G",
             reads=["m0", "sKV", "nrKV", f"free{which}{slot}"], writes=[f"L{which}{slot}_{j}"],
             earliest=earliest, latest=latest))
    def kvadv(sig):
        if sig % 8 == 7:
            txt = (f"s_add_u32 {sKV}, {sKV}, {(1<<23) - 7*16384}\ns_cmp_lt_u32 {sPass}, {C.NPASS-1}\n"
                   f"s_cselect_b32 {sKV}, {sKV}, 0\ns_cselect_b32 s10, s10, 0\ns_cselect_b32 s14, s14, 0")
            A(Op(txt, "S", reads=["sKV","sPass"], writes=["sKV","nrKV"], units=4))
        else:
            A(Op(f"s_add_u32 {sKV}, {sKV}, 16384", "S", reads=["sKV"], writes=["sKV"]))
    def qload(qb, earliest=None, latest=None):
        for ks in range(4):
            off = f" offset:{ks*64}" if ks else ""
            e = (earliest[0], earliest[1] + 3*ks) if isinstance(earliest, tuple) else earliest
            A(Op(f"buffer_load_dwordx4 {rng(Qr(qb,ks))}, {vQ}, {sQ}, {sQo} offen{off}{C.QNT}", "G",
                 reads=["sQo","nrQ"], writes=Qr(qb,ks), earliest=e, latest=latest))
        if qb < 3:
            A(Op(f"s_add_u32 {sQo}, {sQo}, 4096", "S", reads=["sQo"], writes=["sQo"]))
    def qadv():
        txt = (f"s_add_u32 {sQo}, {sQo}, {(1<<24) - 3*4096}\ns_cmp_lt_u32 {sPass}, {C.NPASS-1}\n"
               f"s_cselect_b32 {sQo}, {sQo}, 0\ns_cselect_b32 s6, s6, 0")
        A(Op(txt, "S", reads=["sQo","sPass"], writes=["sQo","nrQ"], units=3))
    def barrier(name, need, frees, gives, earliest=None, latest=None):
        return A(Op("s_barrier", "B", reads=need, writes=frees + gives + ["barorder"], earliest=earliest, latest=latest, tag=name))
    def kreads(sig):
        slot = sig % 4
        for kb in range(4):
            for ks in range(4):
                A(Op(f"ds_read_b128 {rng(Kf(kb,ks))}, {vK} offset:{slot*KSLOT + kb*4*KB + ks*256}", "D",
                     reads=[f"rdyK{slot}", f"freeK{slot}"], writes=Kf(kb,ks)))
    def vreads(sig):
        slot = sig % 4
        for db in range(8):
            j, u = db >> 1, db & 1
            for ks in range(2):
                for t in range(2):
                    d = Vf(db,ks)[2*t:2*t+2]
                    A(Op(f"ds_read_b64_tr_b16 {rng(d)}, {vV} offset:{slot*VSLOT + (8*ks+4*t)*VB + j*256 + 8*u}", "D",
                         reads=[f"rdyV{slot}", f"freeV{slot}"], writes=d))
    def prescale(qb, pos):
        q = sum((Qp(qb,ks) for ks in range(4)), [])
        raw = sum((Qr(qb,ks) for ks in range(4)), [])
        ta, tb = Cm(qb), TMP
        temps = [q[8:12], ta, q[12:16], tb]*2
        for i in range(8):
            t = temps[i]; b = raw[2*i:2*i+2]
            m4(t, AHI, b, None, pos + (2*i,))
            m4(t, ALO, b, t, pos + (2*i+3,))
            V(f"v_cvt_pk_bf16_f32 {q[2*i]}, {t[0]}, {t[1]}", t[0:2], [q[2*i]])
            V(f"v_cvt_pk_bf16_f32 {q[2*i+1]}, {t[2]}, {t[3]}", t[2:4], [q[2*i+1]])
    def phase(sig, qb):
        p, s = divmod(sig, 8)
        ph = 4*sig + qb
        cm = Cm(qb)
        for kb in range(4):
            n = 4*ph + kb
            st = St(n)
            zero = (not C.USE_M0) or (s == 0 and kb < 2)
            for ks in range(4):
                mm = m16(st, Kf(kb,ks), Qp(qb,ks), (None if zero else cm) if ks == 0 else st, (n, 0, ks))
                if ks == 0: Tm[n] = mm
            if C.USE_M0 and s == 0 and kb == 0:
                V(f"v_max3_f32 {cm[0]}, {st[0]}, {st[1]}, {st[2]}", st[0:3], [cm[0]])
                V(f"v_max_f32_e32 {cm[1]}, {cm[0]}, {st[3]}", [cm[0], st[3]], [cm[1]])
                V(f"v_max_f32_e32 {cm[0]}, {cm[0]}, {st[3]}", [cm[0], st[3]], [cm[0]])
                V(f"v_permlane32_swap_b32_e32 {cm[0]}, {cm[1]}", cm[0:2], cm[0:2], kind="E")
                V(f"v_max_f32_e32 {cm[2]}, {cm[0]}, {cm[1]}", cm[0:2], [cm[2]])
                V(f"v_max_f32_e32 {cm[3]}, {cm[0]}, {cm[1]}", cm[0:2], [cm[3]])
                V(f"v_permlane16_swap_b32_e32 {cm[2]}, {cm[3]}", cm[2:4], cm[2:4], kind="E")
                V(f"v_min_f32_e64 {cm[0]}, -{cm[2]}, -{cm[3]}", cm[2:4], [cm[0]])
                V(f"v_min_f32_e64 {cm[1]}, -{cm[2]}, -{cm[3]}", cm[2:4], [cm[1]])
                V(f"v_mov_b32_e32 {cm[2]}, {cm[0]}", [cm[0]], [cm[2]])
                V(f"v_mov_b32_e32 {cm[3]}, {cm[0]}", [cm[0]], [cm[3]])
            pr = Pb(ph, kb >> 1)[2*(kb & 1): 2*(kb & 1) + 2]
            for h in range(2):
                for r in (2*h, 2*h+1):
                    if C.USE_M0 and zero:
                        V(f"v_add_f32_e32 {st[r]}, {cm[0]}, {st[r]}", [cm[0], st[r]], [st[r]])
                    V(f"v_exp_f32_e32 {st[r]}, {st[r]}", [st[r]], [st[r]], kind="E")
                V(f"v_cvt_pk_bf16_f32 {pr[h]}, {st[2*h]}, {st[2*h+1]}", st[2*h:2*h+2], [pr[h]])
        for j in range(4):
            m = 4*ph + j
            if j == 0:
                for ks in range(2):
                    m16(Lq(qb), ONES, Pb(ph,ks), None if (s == 0 and ks == 0) else Lq(qb), (m + C.LAG, 1, 8+ks))
            for u in range(2):
                db = 2*j + u
                for ks in range(2):
                    mm = m16(O(qb,db), Vf(db,ks), Pb(ph,ks), None if (s == 0 and ks == 0) else O(qb,db), (m + C.LAG, 1, 2*u+ks))
                    if u == 0 and ks == 0: Gm[m] = mm
    RT = [f"v{MISC}", f"v{MISC+1}"] if MISC + 2 <= 248 else None
    def epilogue(qb):
        t = TMP[qb & 1] if RT is None else RT[qb & 1]
        sx = sT[qb & 1]
        V(f"v_accvgpr_read_b32 {t}, {Lq(qb)[0]}", [Lq(qb)[0]], [t])
        V(f"v_cmp_ngt_f32_e64 {sx}, {sThr}, {t}", [t], ["s_"+sx])
        A(Op(f"s_or_b64 {sFail}, {sFail}, {sx}", "S", reads=["s_"+sx, "sFail"], writes=["sFail"]))
        V(f"v_rcp_f32_e32 {t}, {t}", [t], [t], kind="E")
        for j in range(4):
            o = O(qb,2*j) + O(qb,2*j+1)
            for h in range(4):
                for r in (2*h, 2*h+1):
                    V(f"v_mul_f32_e32 {o[r]}, {t}, {o[r]}", [t, o[r]], [o[r]])
                V(f"v_cvt_pk_bf16_f32 {o[h]}, {o[2*h]}, {o[2*h+1]}", o[2*h:2*h+2], [o[h]])
            off = f" offset:{j*64}" if j else ""
            A(Op(f"buffer_store_dwordx4 {rng(o[0:4])}, {vQ}, {sO}, {sOo} offen{off}{C.ONT}", "G",
                 reads=o[0:4] + ["sOo"], writes=[]))
        inc = 4096 if qb < 3 else (1 << 24) - 3*4096
        A(Op(f"s_add_u32 {sOo}, {sOo}, {inc}", "S", reads=["sOo"], writes=["sOo"]))

    Ld = lambda w, sig: [f"L{w}{sig%4}_{j}" for j in range(4)]
    for j in range(4): dma(0, "K", j, latest=-1)
    qload(0, latest=-1); qload(1, latest=-1)
    for j in range(4): dma(0, "V", j, latest=-1)
    kvadv(0)
    qload(2, latest=-1); qload(3, latest=-1)
    for sig in (1,2,3):
        for w in "KV":
            for j in range(4): dma(sig, w, j, latest=-1)
        kvadv(sig)
    barrier("K0", Ld("K",0), [], ["rdyK0"], latest=-1)
    kreads(0)
    barrier("V0", Ld("V",0), [], ["rdyV0"], earliest=atT(1))
    vreads(0)
    for sig in range(NSTEP):
        p, s = divmod(sig, 8)
        for qb in range(4):
            if sig == 0: prescale(qb, (4*qb - 1, 2))
            phase(sig, qb)
            if s == 7:
                epilogue(qb)
                if p + 1 < C.NPASS: prescale(qb, (16*sig + 4*qb + 4, 2))
        if s == 0:
            qadv()
            for qb in range(4): qload(qb, earliest=atT(16*(sig+1) + 8 + 5*qb), latest=atT(16*(sig+1) + 30 + 4*qb))
        if s == 5:
            A(Op(f"s_add_u32 {sPass}, {sPass}, 1", "S", reads=["sPass"], writes=["sPass"]))
        if sig + 1 < NSTEP:
            sl = sig % 4
            barrier(f"b{sig}", Ld("K",sig+1) + Ld("V",sig+1), [f"freeK{sl}", f"freeV{sl}"],
                    [f"rdyK{(sig+1)%4}", f"rdyV{(sig+1)%4}"], earliest=atT(16*sig + 12, -2))
            kreads(sig+1); vreads(sig+1)
            k = 0
            for w in "KV":
                for j in range(4):
                    dma(sig+4, w, j, earliest=atT(16*sig + 12, 4 + 12*k), latest=atT(16*sig + 12, 30 + 12*k)); k += 1
            kvadv(sig+4)
    out = S.run()

    lines = [t for (t,o,k) in out]
    def cut(n): return S.gapmark[Tm[n].idx]
    body = []
    if C.ROLL and C.NPASS == 4:
        X = None
        for x in range(16, 100):
            segs = [lines[cut(128*p + x):cut(128*(p+1) + x)] for p in range(3)]
            if segs[0] == segs[1] == segs[2]: X = x; break
        assert X is not None, "no periodic cut"
        Y = None
        for y in range(127, X, -1):
            if lines[cut(X):cut(y)] == lines[cut(384+X):cut(384+y)]: Y = y; break
        assert Y >= 16*6+8, Y
        body += lines[:cut(X)]
        body += ["s_branch L_mid", "L_bnd:"]
        body += lines[cut(Y):cut(128+X)]
        body += ["L_mid:"]
        body += lines[cut(X):cut(Y)]
        body += [f"s_cmp_lt_u32 {sPass}, {C.NPASS}", "s_cbranch_scc1 L_bnd"]
        body += lines[cut(384+Y):]
        info = f"X={X} Y={Y}"
    else:
        body = lines; info = "linear"
    tp = [S.mf[Tm[128*p].idx].t for p in range(C.NPASS)]
    sys.stderr.write(f"{info} model total {S.total} cyc, pass starts {tp}, stats {dict(S.stats)}\n")

    pre = f"""
    s_cmp_ge_u32 s2, 256
    s_cbranch_scc1 L_end
    s_load_dwordx4 s[4:7], s[0:1], 0
    s_load_dwordx4 s[12:15], s[0:1], 16
    v_lshrrev_b32_e32 v1, 6, v0
    v_and_b32_e32 v0, 63, v0
    v_readfirstlane_b32 s34, v1
    s_and_b32 s35, s2, 7                        ; xcd-ish
    s_lshr_b32 s36, s2, 5                       ; group
    s_lshl_b32 s36, s36, 3
    s_add_u32 s36, s36, s35                     ; head0 (0..63)
    s_bfe_u32 s37, s2, 0x20003
    s_lshl_b32 {sKV}, s36, 17
    s_lshl_b32 {sQo}, s36, 18
    s_lshl_b32 s37, s37, 16
    s_add_u32 {sQo}, {sQo}, s37
    s_lshl_b32 s37, s34, 14
    s_add_u32 {sQo}, {sQo}, s37
    s_mov_b32 {sOo}, {sQo}
    s_mov_b32 s38, {sQo}
    s_mov_b32 s39, {sKV}
    s_mul_i32 {sWK}, s34, {4*KB}
    s_mul_i32 {sWV}, s34, {4*VB}
    s_add_u32 {sWV}, {sWV}, {VS}
    v_bfe_u32 v2, v0, 2, 2
    v_lshrrev_b32_e32 v3, 4, v0
    v_and_b32_e32 v4, 3, v0
    v_and_b32_e32 v5, 15, v0
    v_lshlrev_b32_e32 {vD}, 12, v1
    v_lshl_add_u32 {vD}, v2, 8, {vD}
    v_lshl_add_u32 {vD}, v3, 6, {vD}
    v_lshl_add_u32 {vD}, v4, 4, {vD}
    ; Q/O voffset: (l&15)*256 + (l>>4)*16
    v_lshlrev_b32_e32 {vQ}, 8, v5
    v_lshl_add_u32 {vQ}, v3, 4, {vQ}
    s_waitcnt lgkmcnt(0)
    s_mov_b32 s8, s6
    s_and_b32 s9, s7, 0xffff
    s_mov_b32 s10, 0x2000000
    s_mov_b32 s11, 0x20000
    s_and_b32 s5, s5, 0xffff
    s_mov_b32 s6, 0x4000000
    s_mov_b32 s7, 0x20000
    s_mov_b32 s16, s14
    s_and_b32 s17, s15, 0xffff
    s_mov_b32 s18, 0x4000000
    s_mov_b32 s19, 0x20000
    s_and_b32 s13, s13, 0xffff
    s_mov_b32 s14, 0x2000000
    s_mov_b32 s15, 0x20000
"""
    pre2 = f"""
    v_mul_u32_u24_e32 {vK}, {KB}, v2
    v_lshl_add_u32 {vK}, v4, 6, {vK}
    v_lshl_add_u32 {vK}, v3, 4, {vK}
    v_mul_u32_u24_e32 {vV}, {VB}, v3
    v_lshl_add_u32 {vV}, v5, 4, {vV}
    v_add_u32_e32 {vV}, {VS}, {vV}
    s_mov_b32 {sPass}, 0
    s_mov_b32 {sThr}, {hex(f2u(C.THR))}
    s_mov_b64 {sFail}, {-1 if C.FORCE_SLOW else 0}
    v_mov_b32_e32 v6, 0x3f803f80
    v_accvgpr_write_b32 {ONES[0]}, v6
    v_accvgpr_write_b32 {ONES[1]}, v6
    v_accvgpr_write_b32 {ONES[2]}, v6
    v_accvgpr_write_b32 {ONES[3]}, v6
    v_and_b32_e32 v6, 1, v0
    v_lshlrev_b32_e32 v6, 4, v6
    v_mov_b32_e32 v7, {hex(chi)}
    v_mov_b32_e32 v8, {hex(clo)}
    v_lshlrev_b32_e32 v7, v6, v7
    v_lshlrev_b32_e32 v8, v6, v8
    v_cmp_gt_u32_e32 vcc, 2, v4
    s_nop 1
    v_cndmask_b32_e32 v9, 0, v7, vcc
    v_cndmask_b32_e32 v10, 0, v8, vcc
    v_sub_u32_e32 v7, v7, v9
    v_sub_u32_e32 v8, v8, v10
    v_accvgpr_write_b32 {AHI[0]}, v9
    v_accvgpr_write_b32 {AHI[1]}, v7
    v_accvgpr_write_b32 {ALO[0]}, v10
    v_accvgpr_write_b32 {ALO[1]}, v8
"""
    fi = next(i for i,l in enumerate(body) if l.startswith("s_waitcnt"))
    body = body[:fi] + [pre2.strip("\n")] + body[fi:]

    from slow import slow_path
    slow = slow_path(locals())
    hdr = open("standalone__mha_softmax__near_ridge.s.ref").read().split("; Override launch")[0]
    txt = hdr + f"; @launch grid=(256,1,1) block=(256,1,1) lds={LDS}\n"
    txt += f""".amdgcn_target "amdgcn-amd-amdhsa--gfx950"
.text
.globl {KNAME}
.p2align 8
.type {KNAME},@function
{KNAME}:"""
    txt += pre
    for l in body:
        for x in l.split("\n"):
            txt += (x if x.endswith(":") or x.startswith("    ") else "    " + x) + "\n"
    txt += slow
    txt += f"""L_end:
    s_endpgm
.section .rodata,"a"
.p2align 6
.amdhsa_kernel {KNAME}
  .amdhsa_next_free_vgpr 512
  .amdhsa_next_free_sgpr 64
  .amdhsa_accum_offset 256
  .amdhsa_group_segment_fixed_size 0
  .amdhsa_kernarg_size 48
  .amdhsa_user_sgpr_count 2
  .amdhsa_user_sgpr_kernarg_segment_ptr 1
  .amdhsa_system_sgpr_workgroup_id_x 1
  .amdhsa_float_denorm_mode_32 3
.end_amdhsa_kernel
"""
    return txt

if __name__ == "__main__":
    cfg = Cfg()
    outp = sys.argv[1]
    for a in sys.argv[2:]:
        k, v = a.split("=", 1)
        old = getattr(cfg, k)
        setattr(cfg, k, (" " + v if v else "") if isinstance(old, str) else type(old)(eval(v)))
    open(outp, "w").write(generate(cfg))
```

```python
import sys, struct, math, argparse
from sched import Op, Sched

KNAME = "standalone__mha_softmax__near_ridge_kernel"

def f2u(x): return struct.unpack("<I", struct.pack("<f", x))[0]
def bf16_rne(x):
    u = f2u(x); u = (u + 0x7fff + ((u >> 16) & 1)) >> 16
    return u
def bf2f(h): return struct.unpack("<f", struct.pack("<I", h << 16))[0]

class Cfg:
    LAG = 5; NS = 4; NP = 2; DSLAT = 10; MAXCAP = 6; MARGIN = 1
    KPAD = 32; VPAD = 8
    USE_M0 = True
    NPASS = 4
    QNT = ""; ONT = ""; KVNT = ""
    STAMP = False
    ROLL = True
    PK = False
    THR = 2.0**40
    FORCE_SLOW = False
    SPIN = -1
    SPINK = 0

def vr(a, n=1): return [f"v{a+i}" for i in range(n)]
def ar(a, n=1): return [f"a{a+i}" for i in range(n)]
def rng(regs):
    p = regs[0][0]; a = int(regs[0][1:])
    return regs[0] if len(regs) == 1 else f"{p}[{a}:{a+len(regs)-1}]"

def generate(cfg):
    C = cfg
    KB = 1024 + C.KPAD; VB = 1024 + C.VPAD
    KSLOT = 16*KB; VSLOT = 16*VB; VS = 4*KSLOT
    LDS = VS + 4*VSLOT
    O  = lambda qb, db: vr(qb*32 + db*4, 4)
    Qp = lambda qb, ks: vr(128 + qb*16 + ks*4, 4)
    Cm = lambda qb: vr(192 + qb*4, 4)
    SB = 208; PB = SB + 4*C.NS
    St = lambda n: vr(SB + (n % C.NS)*4, 4)
    Pb = lambda ph, ks: vr(PB + (ph % C.NP)*8 + ks*4, 4)
    MISC = PB + 8*C.NP
    assert MISC <= 248
    TMP = vr(248, 4)
    vK, vV, vD, vQ = "v252", "v253", "v254", "v255"
    Kf = lambda kb, ks: ar(kb*16 + ks*4, 4)
    Vf = lambda db, ks: ar(64 + db*8 + ks*4, 4)
    Qr = lambda qb, ks: ar(128 + qb*16 + ks*4, 4)
    Lq = lambda qb: ar(192 + qb*4, 4)
    ONES = ar(208, 4); AHI = ar(212, 2); ALO = ar(214, 2)
    sQ, sK, sV, sO = "s[4:7]", "s[8:11]", "s[12:15]", "s[16:19]"
    sKV, sQo, sOo, sWK, sWV, sPass, sThr = "s20", "s21", "s22", "s23", "s24", "s25", "s26"
    sFail = "s[28:29]"; sT = ["s[30:31]", "s[32:33]"]
    c = math.log2(math.e) / math.sqrt(128.0)
    chi = bf16_rne(c); clo = bf16_rne(c - bf2f(chi))

    S = Sched(ds_lat=C.DSLAT, maxcap=C.MAXCAP, margin=C.MARGIN)
    A = S.add
    NSTEP = 8*C.NPASS
    Tm = {}; Gm = {}
    def m16(D, a, b, c_, pos, tag=""):
        cs = "0" if c_ is None else rng(c_)
        return A(Op(f"v_mfma_f32_16x16x32_bf16 {rng(D)}, {rng(a)}, {rng(b)}, {cs}", "M16",
                    reads=a+b+(c_ or []), writes=D, pos=pos, creads=(c_ or []), tag=tag))
    def m4(D, a, b, c_, pos):
        cs = "0" if c_ is None else rng(c_)
        return A(Op(f"v_mfma_f32_4x4x4_16b_bf16 {rng(D)}, {rng(a)}, {rng(b)}, {cs}", "M4",
                    reads=a+b+(c_ or []), writes=D, pos=pos, creads=(c_ or [])))
    def V(text, r, w, kind="V", **kw): return A(Op(text, kind, reads=r, writes=w, **kw))

    class Later:
        def __init__(s, d, k): s.d, s.k = d, k
        @property
        def idx(s):
            k = s.k
            while k not in s.d: k -= 1
            return s.d[k].idx
    def atT(n, off=0): return (Later(Tm, n), off)

    def dma(sig, which, j, earliest=None, latest=None):
        slot = sig % 4
        if which == "K": base, m0imm, srd = sWK, slot*KSLOT + j*C.KPAD, sK
        else:            base, m0imm, srd = sWV, slot*VSLOT + j*C.VPAD, sV
        e2 = (earliest[0], earliest[1]-2) if isinstance(earliest, tuple) else earliest
        A(Op(f"s_add_u32 m0, {base}, {m0imm}", "S", reads=[], writes=["m0"], earliest=e2))
        off = f" offset:{j*1024}" if j else ""
        return A(Op(f"buffer_load_dwordx4 {vD}, {srd}, {sKV} offen{off}{C.KVNT} lds", "G",
             reads=["m0", "sKV", "nrKV", f"free{which}{slot}"], writes=[f"L{which}{slot}_{j}"],
             earliest=earliest, latest=latest))
    def kvadv(sig):
        if sig % 8 == 7:
            txt = (f"s_add_u32 {sKV}, {sKV}, {(1<<23) - 7*16384}\ns_cmp_lt_u32 {sPass}, {C.NPASS-1}\n"
                   f"s_cselect_b32 {sKV}, {sKV}, 0\ns_cselect_b32 s10, s10, 0\ns_cselect_b32 s14, s14, 0")
            A(Op(txt, "S", reads=["sKV","sPass"], writes=["sKV","nrKV"], units=4))
        else:
            A(Op(f"s_add_u32 {sKV}, {sKV}, 16384", "S", reads=["sKV"], writes=["sKV"]))
    def qload(qb, earliest=None, latest=None):
        for ks in range(4):
            off = f" offset:{ks*64}" if ks else ""
            e = (earliest[0], earliest[1] + 3*ks) if isinstance(earliest, tuple) else earliest
            A(Op(f"buffer_load_dwordx4 {rng(Qr(qb,ks))}, {vQ}, {sQ}, {sQo} offen{off}{C.QNT}", "G",
                 reads=["sQo","nrQ"], writes=Qr(qb,ks), earliest=e, latest=latest))
        if qb < 3:
            A(Op(f"s_add_u32 {sQo}, {sQo}, 4096", "S", reads=["sQo"], writes=["sQo"]))
    def qadv():
        txt = (f"s_add_u32 {sQo}, {sQo}, {(1<<24) - 3*4096}\ns_cmp_lt_u32 {sPass}, {C.NPASS-1}\n"
               f"s_cselect_b32 {sQo}, {sQo}, 0\ns_cselect_b32 s6, s6, 0")
        A(Op(txt, "S", reads=["sQo","sPass"], writes=["sQo","nrQ"], units=3))
    def barrier(name, need, frees, gives, earliest=None, latest=None):
        return A(Op("s_barrier", "B", reads=need, writes=frees + gives + ["barorder"], earliest=earliest, latest=latest, tag=name))
    def kreads(sig):
        slot = sig % 4
        for kb in range(4):
            for ks in range(4):
                A(Op(f"ds_read_b128 {rng(Kf(kb,ks))}, {vK} offset:{slot*KSLOT + kb*4*KB + ks*256}", "D",
                     reads=[f"rdyK{slot}", f"freeK{slot}"], writes=Kf(kb,ks)))
    def vreads(sig):
        slot = sig % 4
        for db in range(8):
            j, u = db >> 1, db & 1
            for ks in range(2):
                for t in range(2):
                    d = Vf(db,ks)[2*t:2*t+2]
                    A(Op(f"ds_read_b64_tr_b16 {rng(d)}, {vV} offset:{slot*VSLOT + (8*ks+4*t)*VB + j*256 + 8*u}", "D",
                         reads=[f"rdyV{slot}", f"freeV{slot}"], writes=d))
    def prescale(qb, pos):
        q = sum((Qp(qb,ks) for ks in range(4)), [])
        raw = sum((Qr(qb,ks) for ks in range(4)), [])
        ta, tb = Cm(qb), TMP
        temps = [q[8:12], ta, q[12:16], tb]*2
        for i in range(8):
            t = temps[i]; b = raw[2*i:2*i+2]
            m4(t, AHI, b, None, pos + (2*i,))
            m4(t, ALO, b, t, pos + (2*i+3,))
            V(f"v_cvt_pk_bf16_f32 {q[2*i]}, {t[0]}, {t[1]}", t[0:2], [q[2*i]])
            V(f"v_cvt_pk_bf16_f32 {q[2*i+1]}, {t[2]}, {t[3]}", t[2:4], [q[2*i+1]])
    def phase(sig, qb):
        p, s = divmod(sig, 8)
        ph = 4*sig + qb
        cm = Cm(qb)
        for kb in range(4):
            n = 4*ph + kb
            st = St(n)
            zero = (not C.USE_M0) or (s == 0 and kb < 2)
            for ks in range(4):
                mm = m16(st, Kf(kb,ks), Qp(qb,ks), (None if zero else cm) if ks == 0 else st, (n, 0, ks))
                if ks == 0: Tm[n] = mm
            if C.USE_M0 and s == 0 and kb == 0:
                V(f"v_max3_f32 {cm[0]}, {st[0]}, {st[1]}, {st[2]}", st[0:3], [cm[0]])
                V(f"v_max_f32_e32 {cm[1]}, {cm[0]}, {st[3]}", [cm[0], st[3]], [cm[1]])
                V(f"v_max_f32_e32 {cm[0]}, {cm[0]}, {st[3]}", [cm[0], st[3]], [cm[0]])
                V(f"v_permlane32_swap_b32_e32 {cm[0]}, {cm[1]}", cm[0:2], cm[0:2], kind="E")
                V(f"v_max_f32_e32 {cm[2]}, {cm[0]}, {cm[1]}", cm[0:2], [cm[2]])
                V(f"v_max_f32_e32 {cm[3]}, {cm[0]}, {cm[1]}", cm[0:2], [cm[3]])
                V(f"v_permlane16_swap_b32_e32 {cm[2]}, {cm[3]}", cm[2:4], cm[2:4], kind="E")
                V(f"v_min_f32_e64 {cm[0]}, -{cm[2]}, -{cm[3]}", cm[2:4], [cm[0]])
                V(f"v_min_f32_e64 {cm[1]}, -{cm[2]}, -{cm[3]}", cm[2:4], [cm[1]])
                V(f"v_mov_b32_e32 {cm[2]}, {cm[0]}", [cm[0]], [cm[2]])
                V(f"v_mov_b32_e32 {cm[3]}, {cm[0]}", [cm[0]], [cm[3]])
            pr = Pb(ph, kb >> 1)[2*(kb & 1): 2*(kb & 1) + 2]
            for h in range(2):
                for r in (2*h, 2*h+1):
                    if C.USE_M0 and zero:
                        V(f"v_add_f32_e32 {st[r]}, {cm[0]}, {st[r]}", [cm[0], st[r]], [st[r]])
                    V(f"v_exp_f32_e32 {st[r]}, {st[r]}", [st[r]], [st[r]], kind="E")
                V(f"v_cvt_pk_bf16_f32 {pr[h]}, {st[2*h]}, {st[2*h+1]}", st[2*h:2*h+2], [pr[h]])
        for j in range(4):
            m = 4*ph + j
            if j == 0:
                for ks in range(2):
                    m16(Lq(qb), ONES, Pb(ph,ks), None if (s == 0 and ks == 0) else Lq(qb), (m + C.LAG, 1, 8+ks))
            for u in range(2):
                db = 2*j + u
                for ks in range(2):
                    mm = m16(O(qb,db), Vf(db,ks), Pb(ph,ks), None if (s == 0 and ks == 0) else O(qb,db), (m + C.LAG, 1, 2*u+ks))
                    if u == 0 and ks == 0: Gm[m] = mm
    RT = [f"v{MISC}", f"v{MISC+1}"] if MISC + 2 <= 248 else None
    def epilogue(qb):
        t = TMP[qb & 1] if RT is None else RT[qb & 1]
        sx = sT[qb & 1]
        V(f"v_accvgpr_read_b32 {t}, {Lq(qb)[0]}", [Lq(qb)[0]], [t])
        V(f"v_cmp_ngt_f32_e64 {sx}, {sThr}, {t}", [t], ["s_"+sx])
        A(Op(f"s_or_b64 {sFail}, {sFail}, {sx}", "S", reads=["s_"+sx, "sFail"], writes=["sFail"]))
        V(f"v_rcp_f32_e32 {t}, {t}", [t], [t], kind="E")
        for j in range(4):
            o = O(qb,2*j) + O(qb,2*j+1)
            for h in range(4):
                for r in (2*h, 2*h+1):
                    V(f"v_mul_f32_e32 {o[r]}, {t}, {o[r]}", [t, o[r]], [o[r]])
                V(f"v_cvt_pk_bf16_f32 {o[h]}, {o[2*h]}, {o[2*h+1]}", o[2*h:2*h+2], [o[h]])
            off = f" offset:{j*64}" if j else ""
            A(Op(f"buffer_store_dwordx4 {rng(o[0:4])}, {vQ}, {sO}, {sOo} offen{off}{C.ONT}", "G",
                 reads=o[0:4] + ["sOo"], writes=[]))
        inc = 4096 if qb < 3 else (1 << 24) - 3*4096
        A(Op(f"s_add_u32 {sOo}, {sOo}, {inc}", "S", reads=["sOo"], writes=["sOo"]))

    Ld = lambda w, sig: [f"L{w}{sig%4}_{j}" for j in range(4)]
    for j in range(4): dma(0, "K", j, latest=-1)
    qload(0, latest=-1); qload(1, latest=-1)
    for j in range(4): dma(0, "V", j, latest=-1)
    kvadv(0)
    qload(2, latest=-1); qload(3, latest=-1)
    for sig in (1,2,3):
        for w in "KV":
            for j in range(4): dma(sig, w, j, latest=-1)
        kvadv(sig)
    barrier("K0", Ld("K",0), [], ["rdyK0"], latest=-1)
    kreads(0)
    barrier("V0", Ld("V",0), [], ["rdyV0"], earliest=atT(1))
    vreads(0)
    for sig in range(NSTEP):
        p, s = divmod(sig, 8)
        for qb in range(4):
            if sig == 0: prescale(qb, (4*qb - 1, 2))
            phase(sig, qb)
            if s == 7:
                epilogue(qb)
                if p + 1 < C.NPASS: prescale(qb, (16*sig + 4*qb + 4, 2))
        if s == 0:
            qadv()
            for qb in range(4): qload(qb, earliest=atT(16*(sig+1) + 8 + 5*qb), latest=atT(16*(sig+1) + 30 + 4*qb))
        if s == 5:
            A(Op(f"s_add_u32 {sPass}, {sPass}, 1", "S", reads=["sPass"], writes=["sPass"]))
        if sig + 1 < NSTEP:
            sl = sig % 4
            barrier(f"b{sig}", Ld("K",sig+1) + Ld("V",sig+1), [f"freeK{sl}", f"freeV{sl}"],
                    [f"rdyK{(sig+1)%4}", f"rdyV{(sig+1)%4}"], earliest=atT(16*sig + 12, -2))
            kreads(sig+1); vreads(sig+1)
            k = 0
            for w in "KV":
                for j in range(4):
                    dma(sig+4, w, j, earliest=atT(16*sig + 12, 4 + 12*k), latest=atT(16*sig + 12, 30 + 12*k)); k += 1
            kvadv(sig+4)
    out = S.run()

    lines = [t for (t,o,k) in out]
    def cut(n): return S.gapmark[Tm[n].idx]
    body = []
    if C.ROLL and C.NPASS == 4:
        X = None
        for x in range(16, 100):
            segs = [lines[cut(128*p + x):cut(128*(p+1) + x)] for p in range(3)]
            if segs[0] == segs[1] == segs[2]: X = x; break
        assert X is not None, "no periodic cut"
        Y = None
        for y in range(127, X, -1):
            if lines[cut(X):cut(y)] == lines[cut(384+X):cut(384+y)]: Y = y; break
        assert Y >= 16*6+8, Y
        body += lines[:cut(X)]
        body += ["s_branch L_mid", "L_bnd:"]
        body += lines[cut(Y):cut(128+X)]
        body += ["L_mid:"]
        body += lines[cut(X):cut(Y)]
        body += [f"s_cmp_lt_u32 {sPass}, {C.NPASS}", "s_cbranch_scc1 L_bnd"]
        body += lines[cut(384+Y):]
        info = f"X={X} Y={Y}"
    else:
        body = lines; info = "linear"
    tp = [S.mf[Tm[128*p].idx].t for p in range(C.NPASS)]
    sys.stderr.write(f"{info} model total {S.total} cyc, pass starts {tp}, stats {dict(S.stats)}\n")

    pre = f"""
    s_cmp_ge_u32 s2, 256
    s_cbranch_scc1 L_end
    s_load_dwordx4 s[4:7], s[0:1], 0
    s_load_dwordx4 s[12:15], s[0:1], 16
    v_lshrrev_b32_e32 v1, 6, v0
    v_and_b32_e32 v0, 63, v0
    v_readfirstlane_b32 s34, v1
    s_and_b32 s35, s2, 7                        ; xcd-ish
    s_lshr_b32 s36, s2, 5                       ; group
    s_lshl_b32 s36, s36, 3
    s_add_u32 s36, s36, s35                     ; head0 (0..63)
    s_bfe_u32 s37, s2, 0x20003
    s_lshl_b32 {sKV}, s36, 17
    s_lshl_b32 {sQo}, s36, 18
    s_lshl_b32 s37, s37, 16
    s_add_u32 {sQo}, {sQo}, s37
    s_lshl_b32 s37, s34, 14
    s_add_u32 {sQo}, {sQo}, s37
    s_mov_b32 {sOo}, {sQo}
    s_mov_b32 s38, {sQo}
    s_mov_b32 s39, {sKV}
    s_mul_i32 {sWK}, s34, {4*KB}
    s_mul_i32 {sWV}, s34, {4*VB}
    s_add_u32 {sWV}, {sWV}, {VS}
    v_bfe_u32 v2, v0, 2, 2
    v_lshrrev_b32_e32 v3, 4, v0
    v_and_b32_e32 v4, 3, v0
    v_and_b32_e32 v5, 15, v0
    v_lshlrev_b32_e32 {vD}, 12, v1
    v_lshl_add_u32 {vD}, v2, 8, {vD}
    v_lshl_add_u32 {vD}, v3, 6, {vD}
    v_lshl_add_u32 {vD}, v4, 4, {vD}
    ; Q/O voffset: (l&15)*256 + (l>>4)*16
    v_lshlrev_b32_e32 {vQ}, 8, v5
    v_lshl_add_u32 {vQ}, v3, 4, {vQ}
    s_waitcnt lgkmcnt(0)
    s_mov_b32 s8, s6
    s_and_b32 s9, s7, 0xffff
    s_mov_b32 s10, 0x2000000
    s_mov_b32 s11, 0x20000
    s_and_b32 s5, s5, 0xffff
    s_mov_b32 s6, 0x4000000
    s_mov_b32 s7, 0x20000
    s_mov_b32 s16, s14
    s_and_b32 s17, s15, 0xffff
    s_mov_b32 s18, 0x4000000
    s_mov_b32 s19, 0x20000
    s_and_b32 s13, s13, 0xffff
    s_mov_b32 s14, 0x2000000
    s_mov_b32 s15, 0x20000
"""
    pre2 = f"""
    v_mul_u32_u24_e32 {vK}, {KB}, v2
    v_lshl_add_u32 {vK}, v4, 6, {vK}
    v_lshl_add_u32 {vK}, v3, 4, {vK}
    v_mul_u32_u24_e32 {vV}, {VB}, v3
    v_lshl_add_u32 {vV}, v5, 4, {vV}
    v_add_u32_e32 {vV}, {VS}, {vV}
    s_mov_b32 {sPass}, 0
    s_mov_b32 {sThr}, {hex(f2u(C.THR))}
    s_mov_b64 {sFail}, {-1 if C.FORCE_SLOW else 0}
    v_mov_b32_e32 v6, 0x3f803f80
    v_accvgpr_write_b32 {ONES[0]}, v6
    v_accvgpr_write_b32 {ONES[1]}, v6
    v_accvgpr_write_b32 {ONES[2]}, v6
    v_accvgpr_write_b32 {ONES[3]}, v6
    v_and_b32_e32 v6, 1, v0
    v_lshlrev_b32_e32 v6, 4, v6
    v_mov_b32_e32 v7, {hex(chi)}
    v_mov_b32_e32 v8, {hex(clo)}
    v_lshlrev_b32_e32 v7, v6, v7
    v_lshlrev_b32_e32 v8, v6, v8
    v_cmp_gt_u32_e32 vcc, 2, v4
    s_nop 1
    v_cndmask_b32_e32 v9, 0, v7, vcc
    v_cndmask_b32_e32 v10, 0, v8, vcc
    v_sub_u32_e32 v7, v7, v9
    v_sub_u32_e32 v8, v8, v10
    v_accvgpr_write_b32 {AHI[0]}, v9
    v_accvgpr_write_b32 {AHI[1]}, v7
    v_accvgpr_write_b32 {ALO[0]}, v10
    v_accvgpr_write_b32 {ALO[1]}, v8
"""
    fi = next(i for i,l in enumerate(body) if l.startswith("s_waitcnt"))
    body = body[:fi] + [pre2.strip("\n")] + body[fi:]

    if C.STAMP:
        stamp = ["v_mov_b32_dpp v242, v242 wave_shr:1 row_mask:0xf bank_mask:0xf",
                 "v_mov_b32_dpp v243, v243 wave_shr:1 row_mask:0xf bank_mask:0xf",
                 "v_writelane_b32 v242, s50, 0", "v_writelane_b32 v243, s52, 0",
                 "s_memtime s[50:51]", "s_memrealtime s[52:53]"]
        nb = []
        for l in body:
            nb.append(l)
            if l == "s_barrier": nb += stamp
        w0 = ["s_waitcnt lgkmcnt(0)"]
        nb += w0 + stamp + ["s_waitcnt vmcnt(0)"] + w0 + stamp + w0 + stamp + w0
        nb += ["s_load_dwordx2 s[56:57], s[0:1], 40", "s_waitcnt lgkmcnt(0)", "s_and_b32 s57, s57, 0xffff",
               "s_mov_b32 s58, 0x1000000", "s_mov_b32 s59, 0x20000",
               "s_lshl_b32 s54, s2, 2", "s_add_u32 s54, s54, s34", "s_lshl_b32 s54, s54, 9",
               "v_mbcnt_lo_u32_b32 v244, -1, 0", "v_mbcnt_hi_u32_b32 v244, -1, v244", "v_lshlrev_b32_e32 v244, 3, v244",
               "buffer_store_dwordx2 v[242:243], v244, s[56:59], s54 offen", "s_waitcnt vmcnt(0)"]
        body = nb
        pre = pre.replace("    s_load_dwordx4 s[4:7], s[0:1], 0\n", "    s_memtime s[50:51]\n    s_memrealtime s[52:53]\n    v_mov_b32_e32 v242, 0\n    v_mov_b32_e32 v243, 0\n    s_load_dwordx4 s[4:7], s[0:1], 0\n")
    if C.SPIN >= 0:
        nb = []
        for l in body:
            nb.append(l)
            if l == "s_barrier":
                nb += ["s_add_u32 s60, s60, 1", f"s_cmp_lg_u32 s60, {C.SPIN}", "s_cbranch_scc1 1f".replace("1f", f"L_sp{len(nb)}"), "s_memrealtime s[52:53]", f"L_sp{len(nb)}:"]
        nb += ["s_waitcnt vmcnt(0)"]
        if C.SPIN == 99: nb += ["s_memrealtime s[52:53]"]
        nb += ["s_waitcnt lgkmcnt(0)", "s_sub_u32 s54, s52, s50", f"s_mul_i32 s54, s54, {C.SPINK}", "s_add_u32 s54, s54, 15000",
               "L_spin:", "s_memrealtime s[52:53]", "s_waitcnt lgkmcnt(0)", "s_sub_u32 s55, s52, s50", "s_cmp_lt_u32 s55, s54", "s_cbranch_scc1 L_spin"]
        body = nb
        pre = pre.replace("    s_load_dwordx4 s[4:7], s[0:1], 0\n", "    s_memrealtime s[50:51]\n    s_mov_b32 s60, 0\n    s_mov_b32 s52, 0\n    s_load_dwordx4 s[4:7], s[0:1], 0\n")
    from slow import slow_path
    slow = slow_path(locals())
    hdr = open("standalone__mha_softmax__near_ridge.s.ref").read().split("; Override launch")[0]
    txt = hdr + f"; @launch grid=(256,1,1) block=(256,1,1) lds={LDS}\n"
    txt += f""".amdgcn_target "amdgcn-amd-amdhsa--gfx950"
.text
.globl {KNAME}
.p2align 8
.type {KNAME},@function
{KNAME}:"""
    txt += pre
    for l in body:
        for x in l.split("\n"):
            txt += (x if x.endswith(":") or x.startswith("    ") else "    " + x) + "\n"
    txt += slow
    txt += f"""L_end:
    s_endpgm
.section .rodata,"a"
.p2align 6
.amdhsa_kernel {KNAME}
  .amdhsa_next_free_vgpr 512
  .amdhsa_next_free_sgpr 64
  .amdhsa_accum_offset 256
  .amdhsa_group_segment_fixed_size 0
  .amdhsa_kernarg_size 48
  .amdhsa_user_sgpr_count 2
  .amdhsa_user_sgpr_kernarg_segment_ptr 1
  .amdhsa_system_sgpr_workgroup_id_x 1
  .amdhsa_float_denorm_mode_32 3
.end_amdhsa_kernel
"""
    return txt

if __name__ == "__main__":
    cfg = Cfg()
    outp = sys.argv[1]
    for a in sys.argv[2:]:
        k, v = a.split("=", 1)
        old = getattr(cfg, k)
        setattr(cfg, k, (" " + v if v else "") if isinstance(old, str) else type(old)(eval(v)))
    open(outp, "w").write(generate(cfg))
```

```python
import bisect, collections
import numpy as np

class Op:
    __slots__ = ("text","kind","reads","writes","pos","earliest","latest","idx","preds","succs",
                 "asap","alap","done","t","n","units","tag","creads","seq","nlines","prio","cnt_idx")
    def __init__(self, text, kind, reads=(), writes=(), pos=None, earliest=None, latest=None,
                 tag="", creads=(), units=None):
        self.text, self.kind = text, kind
        self.reads, self.writes = list(reads), list(writes)
        self.creads = set(creads)
        self.pos = pos
        self.earliest, self.latest = earliest, latest
        self.preds, self.succs = [], []
        self.done = False
        self.tag = tag
        self.nlines = text.count("\n") + 1
        self.units = units if units is not None else {"E":2,"V":1,"D":1,"G":2,"S":0,"B":0,"M16":0,"M4":0,"M32":0,"MS":0}[kind]
    def is_mfma(self): return self.kind[0] == "M"
    def is_valu(self): return self.kind in ("E","V")

PASSES = {"M4":2, "M16":4, "M32":8, "MS":4}
CYC = {"M4":8, "M16":16, "M32":32, "MS":16}
HOLD = {"M4":4, "M16":8, "M32":8, "MS":12}
WS_D_USE = {2:5, 4:8, 8:12}
WS_D_C_SAME = {2:2, 4:0, 8:0}
WS_D_C_OVL = {2:4, 4:6, 8:10}
WS_C_WAR = {2:1, 4:3, 8:7}

def isreg(r): return r[0] in "va" and r[1:].isdigit()

def edge_req(p, c, typ, reg):
    if not isreg(reg):
        if reg == "m0" and typ == "RAW" and c.kind == "G": return 1, None
        if typ == "RAW" and p.kind == "G": return 0, "vm"
        if typ == "WAR" and p.kind == "D" and c.kind != "D": return 0, "lgkm"
        if typ == "WAW" and p.kind == "D" and c.kind == "G": return 0, "lgkm"
        if typ == "WAW" and p.kind == "G" and c.kind == "D": return 0, "vm"
        if typ == "RAW" and p.is_valu() and reg[0] == "s":
            return (5 if c.kind == "G" else 3), None
        return 0, None
    if p.is_mfma():
        ps = PASSES[p.kind]
        if typ in ("RAW","WAW"):
            if c.is_mfma():
                if typ == "RAW" and reg in c.creads:
                    same = (c.kind == p.kind and sorted(c.creads) == sorted(p.writes))
                    return (WS_D_C_SAME if same else WS_D_C_OVL)[ps], None
                if typ == "RAW": return WS_D_USE[ps], None
                return (0 if c.kind == p.kind else WS_D_USE[ps]), None
            return WS_D_USE[ps], None
        else:
            if reg in p.creads and not c.is_mfma(): return WS_C_WAR[ps], None
            if reg in p.creads and c.is_mfma() and c.kind != p.kind: return WS_C_WAR[ps], None
            return 0, None
    if p.kind == "D":
        if typ in ("RAW","WAW"): return 0, "lgkm"
        return (2 if p.tag == "dsw" else 0), None
    if p.kind == "G":
        if typ in ("RAW","WAW"): return 0, "vm"
        return 2, None
    if p.is_valu():
        if typ == "RAW":
            if c.is_mfma(): return 2, None
            if "permlane" in c.text: return 2, None
            if "readfirstlane" in c.text or "readlane" in c.text: return 1, None
            if p.kind == "E" and "permlane" not in p.text: return 1, None
            return 0, None
        return 0, None
    return 0, None

class Sched:
    def __init__(self, ds_lat=10, maxcap=6, margin=0, lds_backlog=16, lds_scale=1.0):
        self.ops = []
        self.lastw = {}
        self.readers = collections.defaultdict(list)
        self.ds_lat = ds_lat
        self.maxcap = maxcap
        self.margin = margin
        self.lds_backlog = lds_backlog; self.lds_scale = lds_scale
    def add(self, op):
        op.seq = len(self.ops)
        deps = {}
        def dep(p, typ, reg):
            if p is op: return
            ws, wt = edge_req(p, op, typ, reg)
            o = deps.get(p, (0, None))
            deps[p] = (max(o[0], ws), wt or o[1])
        for r in op.reads:
            if r in self.lastw: dep(self.lastw[r], "RAW", r)
        for r in op.writes:
            if r in self.lastw: dep(self.lastw[r], "WAW", r)
            for p in self.readers[r]: dep(p, "WAR", r)
        for r in op.reads: self.readers[r].append(op)
        for r in op.writes:
            self.lastw[r] = op
            self.readers[r] = [op] if r in op.reads else []
        for p,(ws,wt) in deps.items():
            op.preds.append((p,ws,wt)); p.succs.append((op,ws,wt))
        self.ops.append(op)
        return op

    def run(self):
        mf = sorted([o for o in self.ops if o.is_mfma()], key=lambda o:(o.pos,o.seq))
        for i,o in enumerate(mf): o.idx = i
        self.mf = mf
        N = len(mf)
        fill = [o for o in self.ops if not o.is_mfma()]
        for o in mf:
            for p,ws,wt in o.preds:
                if p.is_mfma() and p.idx >= o.idx:
                    raise Exception(f"MFMA order violates dep: {p.text} -> {o.text}")
        def ref(x):
            if x is None: return None
            if isinstance(x, tuple): return x[0].idx + x[1]
            return x
        def gaps_for(p, ws):
            need = 4*(ws+1)
            if ws == 0: return 0
            t = 0; i = p.idx
            while True:
                if t + HOLD[mf[i].kind] >= need or i+1 >= N: return i - p.idx
                t += CYC[mf[i].kind]; i += 1
        for o in self.ops:
            if o.is_mfma(): o.asap = o.idx; continue
            a = -1
            for p,ws,wt in o.preds:
                if p.is_mfma(): a = max(a, p.idx + gaps_for(p, ws))
                else: a = max(a, p.asap)
            e = ref(o.earliest)
            if e is not None: a = max(a, min(e, N-1))
            o.asap = a
        for o in reversed(self.ops):
            if o.is_mfma(): o.alap = o.idx; continue
            l = float(N-1)
            for c,ws,wt in o.succs:
                if c.is_mfma():
                    x = c.idx - 1
                    if ws >= 1: x -= 1
                    if wt == "lgkm": x -= self.ds_lat
                    if wt == "vm": x -= 2
                else:
                    x = c.alap
                    if wt == "lgkm": x -= self.ds_lat
                    elif wt == "vm": x -= 1
                    elif c.kind in ("G","D","S","B") : x -= 1
                    elif ws >= 1: x -= 1
                    else: x -= 0.5*max(o.units,0.0)
                l = min(l, x)
            e = ref(o.latest)
            if e is not None: l = min(l, e)
            o.prio = l
            o.alap = l
        for o in self.ops:
            if not o.is_mfma():
                o.alap = max(o.alap, o.asap)
        out = []
        self.out = out
        st = dict(t=0, n=0, pipe=0, vfree=0, lastvalu=False, lds=0)
        def ldscost(o):
            return self.lds_scale * (8 if "b64" in o.text else (32 if "write" in o.text else 16))
        tl = dict(t=0)
        dsq = []; vmq = []
        cov = dict(lgkm=0, vm=0)
        stats = collections.Counter()
        gapmark = []
        def emit_raw(text, op=None, kind="S"):
            t = st["t"]
            if kind[0] == "M":
                t = max(t, st["pipe"], st["vfree"])
                st["pipe"] = t + CYC[kind]; st["vfree"] = t + HOLD[kind]; st["t"] = t + 4; st["lastvalu"] = False
            elif kind in ("E","V"):
                t = max(t, st["vfree"]); d = 8 if kind == "E" else 4
                st["t"] = t + d; st["vfree"] = t + d; st["lastvalu"] = True
            elif kind in ("D","G"):
                t = max(t, st["vfree"])
                if st["lastvalu"]: t += 8; stats["mem_after_valu"] += 1
                d = 4*op.units
                if kind == "D": st["lds"] = max(st["lds"], t) + ldscost(op)
                st["t"] = t + d; st["vfree"] = t + d; st["lastvalu"] = False
            else:
                nl = text.count("\n") + 1
                st["t"] = t + 4*nl + (12 if kind == "B" else 0)
            if op is not None:
                op.t = t; op.n = len(out); op.done = True
                if kind == "D": op.cnt_idx = len(dsq); dsq.append(op)
                if kind == "G": op.cnt_idx = len(vmq); vmq.append(op)
            out.append((text, op, kind))
        def states_since(p):
            if not p.is_mfma():
                s = 0
                for (text,op,kind) in out[p.n+1:]:
                    if text.startswith("s_nop"): s += int(text.split()[1]) + 1
                    else: s += text.count("\n")+1
                    if s > 24: break
                return s
            t = 4; pipe = CYC[p.kind]
            for (text,op,kind) in out[p.n+1:]:
                if kind[0] == "M":
                    t = max(t, pipe); pipe = t + CYC[kind]; t += 4
                elif text.startswith("s_nop"): t += 4*(int(text.split()[1]) + 1)
                else: t += 4*(text.count("\n")+1)
                if t > 120: break
            return t//4 - 1
        def need_ws(o):
            k = 0
            for p,ws,wt in o.preds:
                if ws > 0:
                    m = self.margin if p.is_mfma() and ws >= 5 else 0
                    k = max(k, ws + m - states_since(p))
            return k
        def need_wait(o):
            lg = vm = None
            for p,ws,wt in o.preds:
                if wt == "lgkm" and p.cnt_idx >= cov["lgkm"]: lg = max(lg or 0, p.cnt_idx+1)
                if wt == "vm" and p.cnt_idx >= cov["vm"]: vm = max(vm or 0, p.cnt_idx+1)
            return lg, vm
        def emit_wait(lg, vm):
            parts = []
            if vm is not None:
                n = min(len(vmq) - vm, 63); parts.append(f"vmcnt({n})"); cov["vm"] = len(vmq) - n
            if lg is not None:
                k = lg
                while k < len(dsq) and st["t"] - dsq[k].t >= 16*self.ds_lat + 32: k += 1
                if st["t"] - dsq[lg-1].t < 16*self.ds_lat*0.6: stats["short_ds"] += 1
                n = min(len(dsq) - k, 15); parts.append(f"lgkmcnt({n})"); cov["lgkm"] = len(dsq) - n
            emit_raw("s_waitcnt " + " ".join(parts))
            stats["waits"] += 1
        def emit(o):
            lg, vm = need_wait(o)
            if lg is not None or vm is not None: emit_wait(lg, vm); stats["late_wait"] += 1
            k = need_ws(o)
            if k > 0:
                emit_raw(f"s_nop {k-1}"); st["t"] += 4*(k-1); stats["nop_states"] += k
            emit_raw(o.text, o, o.kind)
        def force(o):
            if o.done: return
            for p,ws,wt in sorted(o.preds, key=lambda x:x[0].seq):
                if not p.done:
                    if p.is_mfma(): raise Exception(f"infeasible: {o.text} needs MFMA {p.text} idx {p.idx}")
                    force(p)
            emit(o)
            stats["forced"] += 1
        pend = sorted(fill, key=lambda o:(o.asap,o.seq))
        pi = 0
        active = []
        byalap = sorted(fill, key=lambda o:o.alap)
        alaps = [o.alap for o in byalap]
        lo = 0
        capg = [ (CYC[m.kind]-HOLD[m.kind])//4 for m in mf ]
        cum = [0]
        for c in capg: cum.append(cum[-1]+c)
        cumn = np.array(cum, dtype=float)
        def ready(o, i):
            return all(p.done for p,ws,wt in o.preds)
        for i in range(-1, N):
            if i >= 0:
                m = mf[i]
                for p,ws,wt in sorted(m.preds, key=lambda x:x[0].seq):
                    if not p.done: force(p)
                gapmark.append(len(out))
                emit(m)
            while pi < len(pend) and pend[pi].asap <= i:
                active.append(pend[pi]); pi += 1
            active = [o for o in active if not o.done]
            active.sort(key=lambda o:(o.prio,o.seq))
            if i == -1 or i == N-1:
                for o in sorted(active, key=lambda o:o.seq):
                    if i == N-1 or o.alap < 0: force(o)
                continue
            while lo < len(byalap) and byalap[lo].done: lo += 1
            W = min(140, N - i)
            H = np.zeros((W+1, W))
            for k in range(lo, len(byalap)):
                o = byalap[k]
                if o.alap >= i + W: break
                if o.done or not o.units: continue
                H[max(o.asap - i, 0), max(int(o.alap) - i, 0)] += o.units
            Dm = np.cumsum(np.cumsum(H[::-1], axis=0)[::-1], axis=1)
            cw = cumn[i:i+W+1]
            capad = cw[None,1:] - cw[:,None]
            ex = np.maximum(Dm - np.maximum(capad, 0), 0)
            L = ex[1:].max(axis=0)
            need = int((Dm[0] - capad[1] - L).max())
            cap = max(capg[i], min(need, self.maxcap))
            used = 0
            sfree = True
            nxt = mf[i+1]
            if all(p.done for p,ws,wt in nxt.preds if wt):
                lg, vm = need_wait(nxt)
                if lg is not None or vm is not None:
                    emit_wait(lg, vm); sfree = False
            for o in active:
                if o.kind in ("S","B") and not o.done and ready(o,i) and need_ws(o) == 0:
                    lg, vm = need_wait(o)
                    if sfree and (lg is not None or vm is not None):
                        emit_wait(lg, vm); sfree = False; continue
                    if sfree or o.alap < i+1:
                        if o.units and used + o.units > cap and o.alap >= i+1: continue
                        if not sfree: used += 1
                        emit(o); used += o.units; sfree = False
            cand = [o for o in active if o.kind not in ("S","B")]
            valu_started = False
            def pick():
                r = [o for o in cand if not o.done and ready(o,i) and need_ws(o) == 0
                     and not (valu_started and o.kind in ("D","G") and o.alap >= i+1)]
                return r
            r = pick()
            chosen = []; u = used
            lb = max(st["lds"] - (mf[i].t + HOLD[mf[i].kind]), 0)
            for o in r:
                if o.kind == "D" and lb > self.lds_backlog and o.alap >= i+1: continue
                if u + o.units <= cap or o.alap < i+1 or (u == 0 and o.units > cap and need >= o.units):
                    chosen.append(o); u += o.units
                    if o.kind == "D": lb += ldscost(o) - 4
            if u < cap and len(chosen) == 1 and chosen[0].units == 1 and chosen[0].alap >= i+2 and cap - used == 2:
                two = [o for o in r if o.units == 2]
                follow = any((not c.is_mfma()) and c.kind == "V" and ws == 0 and c.asap <= i and
                             all(p.done or p is chosen[0] for p,_,_ in c.preds) for c,ws,wt in chosen[0].succs)
                if two and not follow: chosen = [two[0]]
            for o in chosen:
                if o.kind in ("D","G"):
                    lg, vm = need_wait(o)
                    emit(o); used += o.units
            valu_started = True
            for o in chosen:
                if o.kind not in ("D","G") and need_ws(o) == 0:
                    emit(o); used += o.units
            while True:
                r = [o for o in pick() if used + o.units <= cap or o.alap < i+1]
                if not r: break
                emit(r[0]); used += r[0].units
        assert all(o.done for o in self.ops)
        self.gapmark = gapmark
        self.stats = stats
        self.total = st["t"]
        return out
```

```python
import sys, struct, math, argparse
from sched import Op, Sched

KNAME = "standalone__mha_softmax__near_ridge_kernel"

def f2u(x): return struct.unpack("<I", struct.pack("<f", x))[0]
def bf16_rne(x):
    u = f2u(x); u = (u + 0x7fff + ((u >> 16) & 1)) >> 16
    return u
def bf2f(h): return struct.unpack("<f", struct.pack("<I", h << 16))[0]

class Cfg:
    LAG = 5; NS = 4; NP = 2; DSLAT = 10; MAXCAP = 6; MARGIN = 1
    KPAD = 32; VPAD = 8
    USE_M0 = True
    NPASS = 4
    QNT = ""; ONT = ""; KVNT = ""
    STAMP = False
    ROLL = True
    PK = False
    PD = 3
    HS = 6
    CPF2 = 0
    PADN = 0
    LDSB = 4; LDSS = 1.5; SMF = True; CPF = True
    NOBAR = False
    DROP = ""
    DBG = False
    DUMMY0 = 1
    QT0 = 11; QPER = 27; QLAT = 19; WU = 6
    THR = 2.0**40
    FORCE_SLOW = False
    SPIN = -1
    SPINK = 0
    SPINB = 15000

def vr(a, n=1): return [f"v{a+i}" for i in range(n)]
def ar(a, n=1): return [f"a{a+i}" for i in range(n)]
def rng(regs):
    p = regs[0][0]; a = int(regs[0][1:])
    return regs[0] if len(regs) == 1 else f"{p}[{a}:{a+len(regs)-1}]"

def generate(cfg):
    C = cfg
    KB = 1024 + C.KPAD; VB = 1024 + C.VPAD
    KSLOT = 16*KB; VSLOT = 16*VB; VS = 4*KSLOT
    SS = VS + 4*VSLOT
    LDS = SS + 16*KB
    O  = lambda qb, db: vr(qb*32 + db*4, 4)
    Qp = lambda qb, ks: vr(128 + qb*16 + ks*4, 4)
    Cm = lambda qb: vr(192 + qb*4, 4)
    SB = 208; PB = SB + 4*C.NS
    St = lambda n: vr(SB + (n % C.NS)*4, 4)
    Pb = lambda ph, ks: vr(PB + (ph % C.NP)*8 + ks*4, 4)
    MISC = PB + 8*C.NP
    assert MISC <= 248
    TMP = vr(248, 4)
    vK, vV, vD, vQ = "v252", "v253", "v254", "v255"
    vS, vL = "v246", "v247"
    vI, vT = "v245", "v244"
    sWS = "s27"
    Kf = lambda kb, ks: ar(kb*16 + ks*4, 4)
    Vf = lambda db, ks: ar(64 + db*8 + ks*4, 4)
    Qr = lambda qb, ks: ar(128 + qb*16 + ks*4, 4)
    Lq = lambda qb: ar(192 + qb*4, 4)
    ONES = ar(208, 4); AHI = ar(212, 2); ALO = ar(214, 2)
    sQ, sK, sV, sO = "s[4:7]", "s[8:11]", "s[12:15]", "s[16:19]"
    sKV, sQo, sOo, sWK, sWV, sPass, sThr = "s20", "s21", "s22", "s23", "s24", "s25", "s26"
    sFail = "s[28:29]"; sT = ["s[30:31]", "s[32:33]"]
    c = math.log2(math.e) / math.sqrt(128.0)
    chi = bf16_rne(c); clo = bf16_rne(c - bf2f(chi))

    S = Sched(ds_lat=C.DSLAT, maxcap=C.MAXCAP, margin=C.MARGIN, lds_backlog=C.LDSB, lds_scale=C.LDSS)
    A = S.add
    NSTEP = 8*C.NPASS
    Tm = {}; Gm = {}
    def m16(D, a, b, c_, pos, tag=""):
        cs = "0" if c_ is None else rng(c_)
        return A(Op(f"v_mfma_f32_16x16x32_bf16 {rng(D)}, {rng(a)}, {rng(b)}, {cs}", "M16",
                    reads=a+b+(c_ or []), writes=D, pos=pos, creads=(c_ or []), tag=tag))
    def m4(D, a, b, c_, pos):
        cs = "0" if c_ is None else rng(c_)
        return A(Op(f"v_mfma_f32_4x4x4_16b_bf16 {rng(D)}, {rng(a)}, {rng(b)}, {cs}", "M4",
                    reads=a+b+(c_ or []), writes=D, pos=pos, creads=(c_ or [])))
    def V(text, r, w, kind="V", **kw): return A(Op(text, kind, reads=r, writes=w, **kw))

    class Later:
        def __init__(s, d, k): s.d, s.k = d, k
        @property
        def idx(s):
            k = s.k
            while k not in s.d: k -= 1
            return s.d[k].idx
    def atT(n, off=0): return (Later(Tm, n), off)

    def dma(sig, which, j, earliest=None, latest=None):
        slot = sig % 4
        if which == "K": base, m0imm, srd = sWK, slot*KSLOT + j*C.KPAD, sK
        else:            base, m0imm, srd = sWV, slot*VSLOT + j*C.VPAD, sV
        e2 = (earliest[0], earliest[1]-2) if isinstance(earliest, tuple) else earliest
        A(Op(f"s_add_u32 m0, {base}, {m0imm}", "S", reads=[], writes=["m0"], earliest=e2))
        off = f" offset:{j*1024}" if j else ""
        return A(Op(f"buffer_load_dwordx4 {vD}, {srd}, {sKV} offen{off}{C.KVNT} lds", "G",
             reads=["m0", "sKV", "nrKV", f"free{which}{slot}"], writes=[f"L{which}{slot}_{j}"],
             earliest=earliest, latest=latest))
    def kvadv(sig):
        if sig % 8 == 7:
            A(Op(f"s_add_u32 {sKV}, {sKV}, {(1<<(17+C.HS)) - 7*16384}", "S", reads=["sKV"], writes=["sKV"]))
            A(Op(f"s_and_b32 {sKV}, {sKV}, s49", "S", reads=["sKV","sM"], writes=["sKV"]))
            A(Op(f"s_and_b32 s10, s10, s49", "S", reads=["sM","nrKV"], writes=["nrKV"]))
            A(Op(f"s_and_b32 s14, s14, s49", "S", reads=["sM","nrKV"], writes=["nrKV"]))
        else:
            A(Op(f"s_add_u32 {sKV}, {sKV}, 16384", "S", reads=["sKV"], writes=["sKV"]))
    def qload(qb, earliest=None, latest=None):
        for ks in range(4):
            off = f" offset:{ks*64}" if ks else ""
            e = (earliest[0], earliest[1] + 3*ks) if isinstance(earliest, tuple) else earliest
            A(Op(f"buffer_load_dwordx4 {rng(Qr(qb,ks))}, {vQ}, {sQ}, {sQo} offen{off}{C.QNT}", "G",
                 reads=["sQo","nrQ"], writes=Qr(qb,ks), earliest=e, latest=latest))
        if qb < 3:
            A(Op(f"s_add_u32 {sQo}, {sQo}, 4096", "S", reads=["sQo"], writes=["sQo"]))
    def qdma(qb, j, t):
        e = atT(t)
        A(Op(f"s_add_u32 m0, {sWS}, {j*C.KPAD}", "S", reads=[], writes=["m0"], earliest=(e[0], -2)))
        off = f" offset:{j*1024}" if j else ""
        A(Op(f"buffer_load_dwordx4 {vD}, {sQ}, {sQo} offen{off}{C.QNT} lds", "G",
             reads=["m0", "sQo", "nrQ"], writes=[f"ST{j}"], earliest=e, latest=(e[0], 24)))
        if qb < 3 and j == 3:
            A(Op(f"s_add_u32 {sQo}, {sQo}, 4096", "S", reads=["sQo"], writes=["sQo"]))
    def qreads(qb, t0):
        A(Op("s_nop 0", "S", reads=[f"ST{j}" for j in range(4)], writes=["STrdy"], earliest=atT(t0), latest=atT(t0, 6), tag="fence"))
        for ks in range(4):
            A(Op(f"ds_read_b128 {rng(Qr(qb,ks))}, {vS} offset:{ks*256}", "D",
                 reads=["STrdy"] + [f"ST{j}" for j in range(4)], writes=Qr(qb,ks), latest=atT(t0, 14)))
    def ostores(qb, t0, dt):
        for i in range(4):
            off = f" offset:{i*1024}" if i else ""
            e = atT(t0 + dt*i) if t0 is not None else None
            A(Op(f"buffer_store_dwordx4 {rng(Qr(qb,i))}, {vD}, {sO}, {sOo} offen{off}{C.ONT}", "G",
                 reads=Qr(qb,i) + ["sOo", "nrO"], writes=[], earliest=e, latest=(e[0], 30) if e else None))
        if qb < 3:
            A(Op(f"s_add_u32 {sOo}, {sOo}, 4096", "S", reads=["sOo"], writes=["sOo"]))
        elif t0 is not None:
            A(Op(f"s_add_u32 {sOo}, {sOo}, s48", "S", reads=["sOo", "s48_"], writes=["sOo"]))
            A(Op(f"s_mov_b32 s48, {(1<<(18+C.HS)) - 3*4096}", "S", reads=[], writes=["s48_"]))
            A(Op(f"s_mov_b32 s18, 0x4000000", "S", reads=[], writes=["nrO"]))
    def qadv(t):
        e = atT(t) if t > 0 else None
        A(Op(f"s_ashr_i32 s49, {sPass}, 31", "S", reads=["sPass"], writes=["sM"], earliest=e))
        A(Op(f"s_add_u32 {sQo}, {sQo}, {(1<<(18+C.HS)) - 3*4096}", "S", reads=["sQo"], writes=["sQo"], earliest=e))
        A(Op(f"s_and_b32 {sQo}, {sQo}, s49", "S", reads=["sQo","sM"], writes=["sQo"]))
        A(Op(f"s_and_b32 s6, s6, s49", "S", reads=["sM","nrQ"], writes=["nrQ"]))
    def barrier(name, need, frees, gives, earliest=None, latest=None):
        return A(Op("s_barrier", "B", reads=need, writes=frees + gives + ["barorder"], earliest=earliest, latest=latest, tag=name))
    def kreads(sig):
        slot = sig % 4
        for kb in range(4):
            for ks in range(4):
                A(Op(f"ds_read_b128 {rng(Kf(kb,ks))}, {vK} offset:{slot*KSLOT + kb*4*KB + ks*256}", "D",
                     reads=[f"rdyK{slot}", f"freeK{slot}"], writes=Kf(kb,ks)))
    def vreads(sig):
        slot = sig % 4
        for db in range(8):
            j, u = db >> 1, db & 1
            for ks in range(2):
                for t in range(2):
                    d = Vf(db,ks)[2*t:2*t+2]
                    A(Op(f"ds_read_b64_tr_b16 {rng(d)}, {vV} offset:{slot*VSLOT + (8*ks+4*t)*VB + j*256 + 8*u}", "D",
                         reads=[f"rdyV{slot}", f"freeV{slot}"], writes=d))
    def prescale(qb, pos):
        q = sum((Qp(qb,ks) for ks in range(4)), [])
        raw = sum((Qr(qb,ks) for ks in range(4)), [])
        ta, tb = Cm(qb), TMP
        temps = [q[8:12], ta, q[12:16], tb]*2
        for i in range(8):
            t = temps[i]; b = raw[2*i:2*i+2]
            mm = m4(t, AHI, b, None, pos + (2*i,))
            if i == 0: first = mm
            m4(t, ALO, b, t, pos + (2*i+3,))
            V(f"v_cvt_pk_bf16_f32 {q[2*i]}, {t[0]}, {t[1]}", t[0:2], [q[2*i]])
            V(f"v_cvt_pk_bf16_f32 {q[2*i+1]}, {t[2]}, {t[3]}", t[2:4], [q[2*i+1]])
        return first
    def phase(sig, qb):
        p, s = divmod(sig, 8)
        ph = 4*sig + qb
        cm = Cm(qb)
        for kb in range(4):
            n = 4*ph + kb
            st = St(n)
            zero = (not C.USE_M0) or (s == 0 and kb < 2)
            for ks in range(4):
                mm = m16(st, Kf(kb,ks), Qp(qb,ks), (None if zero else cm) if ks == 0 else st, (n, 0, ks))
                if ks == 0: Tm[n] = mm
            if C.USE_M0 and s == 0 and kb == 0:
                V(f"v_max3_f32 {cm[0]}, {st[0]}, {st[1]}, {st[2]}", st[0:3], [cm[0]])
                V(f"v_max_f32_e32 {cm[1]}, {cm[0]}, {st[3]}", [cm[0], st[3]], [cm[1]])
                V(f"v_max_f32_e32 {cm[0]}, {cm[0]}, {st[3]}", [cm[0], st[3]], [cm[0]])
                V(f"v_permlane32_swap_b32_e32 {cm[0]}, {cm[1]}", cm[0:2], cm[0:2], kind="E")
                V(f"v_max_f32_e32 {cm[2]}, {cm[0]}, {cm[1]}", cm[0:2], [cm[2]])
                V(f"v_max_f32_e32 {cm[3]}, {cm[0]}, {cm[1]}", cm[0:2], [cm[3]])
                V(f"v_permlane16_swap_b32_e32 {cm[2]}, {cm[3]}", cm[2:4], cm[2:4], kind="E")
                V(f"v_min_f32_e64 {cm[0]}, -{cm[2]}, -{cm[3]}", cm[2:4], [cm[0]])
                V(f"v_min_f32_e64 {cm[1]}, -{cm[2]}, -{cm[3]}", cm[2:4], [cm[1]])
                V(f"v_mov_b32_e32 {cm[2]}, {cm[0]}", [cm[0]], [cm[2]])
                V(f"v_mov_b32_e32 {cm[3]}, {cm[0]}", [cm[0]], [cm[3]])
            pr = Pb(ph, kb >> 1)[2*(kb & 1): 2*(kb & 1) + 2]
            for h in range(2):
                for r in (2*h, 2*h+1):
                    if C.USE_M0 and zero:
                        V(f"v_add_f32_e32 {st[r]}, {cm[0]}, {st[r]}", [cm[0], st[r]], [st[r]])
                    V(f"v_exp_f32_e32 {st[r]}, {st[r]}", [st[r]], [st[r]], kind="E")
                V(f"v_cvt_pk_bf16_f32 {pr[h]}, {st[2*h]}, {st[2*h+1]}", st[2*h:2*h+2], [pr[h]])
        for j in range(4):
            m = 4*ph + j
            if j == 0 and C.SMF:
                if s == 0:
                    for r in range(2): V(f"v_accvgpr_write_b32 {Lq(qb)[r]}, 0", [], [Lq(qb)[r]])
                pp = Pb(ph,0) + Pb(ph,1)
                A(Op(f"v_smfmac_f32_16x16x64_bf16 {rng(Lq(qb))}, {rng(ONES)}, {rng(pp)}, {vI}", "MS",
                     reads=ONES + pp + Lq(qb), writes=Lq(qb), pos=(m + C.LAG, 1, 8), creads=Lq(qb)))
            elif j == 0:
                for ks in range(2):
                    m16(Lq(qb), ONES, Pb(ph,ks), None if (s == 0 and ks == 0) else Lq(qb), (m + C.LAG, 1, 8+ks))
            for u in range(2):
                db = 2*j + u
                for ks in range(2):
                    mm = m16(O(qb,db), Vf(db,ks), Pb(ph,ks), None if (s == 0 and ks == 0) else O(qb,db), (m + C.LAG, 1, 2*u+ks))
                    if u == 0 and ks == 0: Gm[m] = mm
    RT = [f"v{MISC}", f"v{MISC+1}"] if MISC + 2 <= 248 else None
    def epilogue(qb):
        t = TMP[qb & 1] if RT is None else RT[qb & 1]
        sx = sT[qb & 1]
        V(f"v_accvgpr_read_b32 {t}, {Lq(qb)[0]}", [Lq(qb)[0]], [t])
        if C.SMF:
            V(f"v_accvgpr_read_b32 {vT}, {Lq(qb)[1]}", [Lq(qb)[1]], [vT])
            V(f"v_add_f32_e32 {t}, {vT}, {t}", [t, vT], [t])
        V(f"v_cmp_ngt_f32_e64 {sx}, {sThr}, {t}", [t], ["s_"+sx])
        A(Op(f"s_or_b64 {sFail}, {sFail}, {sx}", "S", reads=["s_"+sx, "sFail"], writes=["sFail"]))
        V(f"v_rcp_f32_e32 {t}, {t}", [t], [t], kind="E")
        for j in range(4):
            o = O(qb,2*j) + O(qb,2*j+1)
            for h in range(4):
                for r in (2*h, 2*h+1):
                    V(f"v_mul_f32_e32 {o[r]}, {t}, {o[r]}", [t, o[r]], [o[r]])
                V(f"v_cvt_pk_bf16_f32 {o[h]}, {o[2*h]}, {o[2*h+1]}", o[2*h:2*h+2], [o[h]])
            A(Op(f"ds_write_b128 {vS}, {rng(o[0:4])} offset:{j*256}", "D", reads=o[0:4] + ["STord"],
                 writes=["STord"] + ([f"ST{k}" for k in range(4)] if j == 0 else []), units=C.WU, tag="dsw"))
        for i in range(4):
            A(Op(f"ds_read_b128 {rng(Qr(qb,i))}, {vL} offset:{i*KB}", "D", reads=["STord", f"ST{i}"], writes=Qr(qb,i) + ["STord"]))

    Ld = lambda w, sig: [f"L{w}{sig%4}_{j}" for j in range(4)]
    Pm = {}
    atP = lambda qb, off=0: (Later(Pm, qb), off)
    for j in range(4): dma(0, "K", j, latest=-1)
    qload(0, latest=-1); qload(1, latest=-1)
    barrier("K0", Ld("K",0), [], ["rdyK0"], latest=-1)
    for j in range(4): dma(0, "V", j, latest=-1)
    kvadv(0)
    kreads(0)
    qload(2, earliest=atP(0), latest=atP(0,12)); qload(3, earliest=atP(1), latest=atP(1,12))
    A(Op(f"s_sub_u32 {sQo}, {sQo}, s37", "S", reads=["sQo"], writes=["sQo"]))
    barrier("V0", Ld("V",0), [], ["rdyV0"], earliest=atT(3))
    vreads(0)
    for j in range(4): dma(1, "K", j, earliest=atT(4, 2*j), latest=atT(4, 2*j+4))
    for j in range(4): dma(1, "V", j, earliest=atP(2, 3*j), latest=atP(2, 3*j+4))
    kvadv(1)
    for j in range(4): dma(2, "K", j, earliest=atP(3, 3*j), latest=atP(3, 3*j+4))
    for j in range(4): dma(2, "V", j, earliest=atT(12, 4+6*j), latest=atT(12, 6*j+14))
    kvadv(2)
    if C.PD == 4:
        k = 0
        for w in "KV":
            for j in range(4):
                dma(3, w, j, earliest=atT(15, 6*k), latest=atT(15, 6*k+10)); k += 1
        kvadv(3)
    events = []
    for p in range(C.NPASS):
        for qb in range(4):
            t = 128*p + C.QT0 + C.QPER*qb
            if qb == 0: events.append((t-4, lambda t=t: qadv(t-4)))
            if p > 0 or qb >= C.DUMMY0: events.append((t - 10, lambda qb=qb, t=t: ostores(qb, t - 10, 6)))
            for j in range(4): events.append((t + 2*j, lambda qb=qb, j=j, t=t: qdma(qb, j, t + 2*j)))
            events.append((t + 6 + C.QLAT, lambda qb=qb, t=t: qreads(qb, t + 6 + C.QLAT)))
    def cpf2(t):
        V(f"v_accvgpr_read_b32 {TMP[0]}, a216", [], [TMP[0]], earliest=atT(t-1))
        V(f"v_accvgpr_read_b32 {TMP[1]}, a217", [], [TMP[1]], earliest=atT(t-1))
        A(Op(f"global_load_dword {TMP[2]}, {rng(TMP[0:2])}, off", "G", reads=TMP[0:2], writes=[TMP[2]], earliest=atT(t), latest=atT(t,20)))
    if C.CPF and C.CPF2:
        for p in range(C.NPASS): events.append((128*p + C.CPF2, lambda t=128*p + C.CPF2: cpf2(t)))
    for sig in range(NSTEP - 1):
        k = 0
        for w in "KV":
            for j in range(4):
                t = 16*sig + 13 + 2*k if sig else 16 + (3*k)//2
                events.append((t, lambda sig=sig, w=w, j=j, t=t: dma(sig + C.PD, w, j, earliest=atT(t), latest=atT(t, 20))))
                k += 1
        events.append((t + 0.5, lambda sig=sig: kvadv(sig + C.PD)))
    events.sort(key=lambda e: e[0])
    ei = 0
    def flush(t):
        nonlocal ei
        while ei < len(events) and events[ei][0] < t:
            events[ei][1](); ei += 1
    for sig in range(NSTEP):
        p, s = divmod(sig, 8)
        for qb in range(4):
            if sig == 0: Pm[qb] = prescale(qb, (4*qb - 1, 2))
            phase(sig, qb)
            if s == 7:
                if qb == 0: flush(16*sig + 13)
                if p + 1 < C.NPASS: prescale(qb, (16*sig + 4*qb + 4, 2))
                epilogue(qb)
                if p + 1 == C.NPASS: ostores(qb, None, 0)
        flush(16*sig + 13)
        if s == 6:
            A(Op(f"s_add_u32 {sPass}, {sPass}, 1", "S", reads=["sPass"], writes=["sPass"], earliest=atT(128*p + 80), latest=atT(128*p + 84)))
        if sig + 1 < NSTEP:
            sl = sig % 4
            barrier(f"b{sig}", Ld("K",sig+1) + Ld("V",sig+1), [f"freeK{sl}", f"freeV{sl}"],
                    [f"rdyK{(sig+1)%4}", f"rdyV{(sig+1)%4}"], earliest=atT(16*sig + 12, -2))
            kreads(sig+1); vreads(sig+1)
    out = S.run()

    lines = [t for (t,o,k) in out]
    def cut(n): return S.gapmark[Tm[n].idx]
    body = []
    if C.ROLL and C.NPASS == 4:
        X = None
        for x in range(16, 100):
            segs = [lines[cut(128*p + x):cut(128*(p+1) + x)] for p in range(3)]
            if segs[0] == segs[1] == segs[2]: X = x; break
        assert X is not None, "no periodic cut"
        Y = None
        for y in range(127, X, -1):
            if lines[cut(X):cut(y)] == lines[cut(384+X):cut(384+y)]: Y = y; break
        if C.DBG:
            a_, b_ = lines[cut(Y):cut(Y+2)], lines[cut(384+Y):cut(384+Y+2)]
            for u_, v_ in zip(a_, b_): sys.stderr.write(("   " if u_==v_ else "!! ") + u_[:60].ljust(62) + v_[:60] + "\n")
            a_, b_ = lines[cut(X-2):cut(X)], lines[cut(128+X-2):cut(128+X)]
            for u_, v_ in zip(a_, b_): sys.stderr.write(("   " if u_==v_ else "!! ") + u_[:60].ljust(62) + v_[:60] + "\n")
        assert sum(l.startswith(f"s_add_u32 {sPass},") for l in lines[cut(X):cut(Y)]) == 1
        body += lines[:cut(X)]
        body += ["s_branch L_mid", "L_bnd:"]
        body += lines[cut(Y):cut(128+X)]
        body += ["L_mid:"]
        body += lines[cut(X):cut(Y)]
        body += [f"s_cmp_le_i32 {sPass}, 0", "s_cbranch_scc1 L_bnd"]
        body += lines[cut(384+Y):]
        info = f"X={X} Y={Y}"
    else:
        body = lines; info = "linear"
    tp = [S.mf[Tm[128*p].idx].t for p in range(C.NPASS)]
    sys.stderr.write(f"{info} model total {S.total} cyc, pass starts {tp}, stats {dict(S.stats)}\n")

    cpf = """    s_getpc_b64 s[40:41]
L_pc:
    v_lshlrev_b32_e32 v2, 7, v0
    v_min_u32_e32 v2, L_end-L_pc, v2
    v_mov_b32_e32 v3, s41
    v_add_co_u32_e32 v2, vcc, s40, v2
    s_nop 1
    v_addc_co_u32_e32 v3, vcc, 0, v3, vcc
    global_load_dword v244, v[2:3], off
    v_accvgpr_write_b32 a216, v2
    v_accvgpr_write_b32 a217, v3
""" if C.CPF else ""
    pre = f"""
    s_cmp_ge_u32 s2, 256
    s_cbranch_scc1 L_end
    s_load_dwordx4 s[4:7], s[0:1], 0
    s_load_dwordx4 s[12:15], s[0:1], 16
{cpf}    v_lshrrev_b32_e32 v1, 6, v0
    v_and_b32_e32 v0, 63, v0
    v_readfirstlane_b32 s34, v1
    s_and_b32 s35, s2, 7                        ; xcd-ish
    s_lshr_b32 s36, s2, 5                       ; group
    s_lshl_b32 s36, s36, 3
    s_add_u32 s36, s36, s35                     ; head0 (0..63)
    s_bfe_u32 s37, s2, 0x20003
    s_lshl_b32 {sKV}, s36, {17 if C.HS else 19}
    s_lshl_b32 {sQo}, s36, {18 if C.HS else 20}
    s_lshl_b32 s37, s37, 16
    s_add_u32 {sQo}, {sQo}, s37
    s_lshl_b32 s37, s34, 14
    s_add_u32 {sQo}, {sQo}, s37
    s_mov_b32 s38, {sQo}
    s_lshl_b32 s37, s34, 12
    s_sub_u32 {sOo}, {sQo}, s37
    s_mov_b32 s39, {sKV}
    s_mul_i32 {sWK}, s34, {4*KB}
    s_mul_i32 {sWV}, s34, {4*VB}
    s_add_u32 {sWV}, {sWV}, {VS}
    s_add_u32 {sWS}, {sWK}, {SS}
    v_bfe_u32 v2, v0, 2, 2
    v_lshrrev_b32_e32 v3, 4, v0
    v_and_b32_e32 v4, 3, v0
    v_and_b32_e32 v5, 15, v0
    v_lshlrev_b32_e32 {vD}, 12, v1
    v_lshl_add_u32 {vD}, v2, 8, {vD}
    v_lshl_add_u32 {vD}, v3, 6, {vD}
    v_lshl_add_u32 {vD}, v4, 4, {vD}
    ; Q/O voffset: (l&15)*256 + (l>>4)*16
    v_lshlrev_b32_e32 {vQ}, 8, v5
    v_lshl_add_u32 {vQ}, v3, 4, {vQ}
    s_waitcnt lgkmcnt(0)
    s_mov_b32 s8, s6
    s_and_b32 s9, s7, 0xffff
    s_mov_b32 s10, 0x2000000
    s_mov_b32 s11, 0x20000
    s_and_b32 s5, s5, 0xffff
    s_mov_b32 s6, 0x4000000
    s_mov_b32 s7, 0x20000
    s_mov_b32 s16, s14
    s_and_b32 s17, s15, 0xffff
    s_mov_b32 s18, 0
    s_mov_b32 s48, {-(3-C.DUMMY0)*4096}
    s_mov_b32 s19, 0x20000
    s_and_b32 s13, s13, 0xffff
    s_mov_b32 s14, 0x2000000
    s_mov_b32 s15, 0x20000
"""
    pre2 = f"""
    v_mul_u32_u24_e32 {vK}, {KB}, v2
    v_lshl_add_u32 {vK}, v4, 6, {vK}
    v_lshl_add_u32 {vK}, v3, 4, {vK}
    v_mul_u32_u24_e32 {vV}, {VB}, v3
    v_lshl_add_u32 {vV}, v5, 4, {vV}
    v_add_u32_e32 {vV}, {VS}, {vV}
    v_add_u32_e32 {vS}, {sWS}, {vK}
    v_lshl_add_u32 {vL}, v0, 4, {sWS}
    s_mov_b32 {sPass}, {1-C.NPASS}
    s_mov_b32 {sThr}, {hex(f2u(C.THR))}
    s_mov_b64 {sFail}, {-1 if C.FORCE_SLOW else 0}
    v_mov_b32_e32 v6, 0x3f803f80
    v_accvgpr_write_b32 {ONES[0]}, v6
    v_accvgpr_write_b32 {ONES[1]}, v6
    v_accvgpr_write_b32 {ONES[2]}, v6
    v_accvgpr_write_b32 {ONES[3]}, v6
    v_and_b32_e32 v6, 1, v0
    v_mul_u32_u24_e32 {vI}, 0xaaaa, v6
    v_add_u32_e32 {vI}, 0x4444, {vI}             ; even rows sum k%4 in (0,1), odd rows k%4 in (2,3)
    v_lshl_or_b32 {vI}, {vI}, 16, {vI}
    v_lshlrev_b32_e32 v6, 4, v6
    v_mov_b32_e32 v7, {hex(chi)}
    v_mov_b32_e32 v8, {hex(clo)}
    v_lshlrev_b32_e32 v7, v6, v7
    v_lshlrev_b32_e32 v8, v6, v8
    v_cmp_gt_u32_e32 vcc, 2, v4
    s_nop 1
    v_cndmask_b32_e32 v9, 0, v7, vcc
    v_cndmask_b32_e32 v10, 0, v8, vcc
    v_sub_u32_e32 v7, v7, v9
    v_sub_u32_e32 v8, v8, v10
    v_accvgpr_write_b32 {AHI[0]}, v9
    v_accvgpr_write_b32 {AHI[1]}, v7
    v_accvgpr_write_b32 {ALO[0]}, v10
    v_accvgpr_write_b32 {ALO[1]}, v8
    v_accvgpr_write_b32 {Lq(0)[2]}, 0
    v_accvgpr_write_b32 {Lq(0)[3]}, 0
    v_accvgpr_write_b32 {Lq(1)[2]}, 0
    v_accvgpr_write_b32 {Lq(1)[3]}, 0
    v_accvgpr_write_b32 {Lq(2)[2]}, 0
    v_accvgpr_write_b32 {Lq(2)[3]}, 0
    v_accvgpr_write_b32 {Lq(3)[2]}, 0
    v_accvgpr_write_b32 {Lq(3)[3]}, 0
"""
    fi = next(i for i,l in enumerate(body) if l.startswith("s_waitcnt"))
    body = body[:fi] + [pre2.strip("\n")] + body[fi:]

    if C.PADN:
        nb = []; k = 0; since = 0
        for i_, l in enumerate(body):
            nb.append(l); since += 1
            if i_ > fi + 1 and since >= C.PADN and l.startswith("v_mfma_f32_16") and i_+1 < len(body) and not body[i_+1].startswith("s_") and not body[i_+1].endswith(":"):
                nb += [f"L_pad{k}:", f"s_cbranch_execz L_pad{k+1}"]; k += 1; since = 0
        nb = nb[:fi+1] + ["s_mov_b64 exec, 0", "s_branch L_pad0", f"L_pad{k}:", "s_mov_b64 exec, -1"] + nb[fi+1:]
        body = nb
        sys.stderr.write(f"pads {k}\n")
    bt = [0] + [o.t for (t_,o,k_) in out if k_ == "B"] + [S.total]
    sys.stderr.write("model dcyc " + " ".join(str(b-a) for a,b in zip(bt, bt[1:])) + "\n")
    if C.DROP.strip():
        import re as _re
        pat = _re.compile(C.DROP.strip())
        body = [l for l in body if not pat.search(l)]
    if C.STAMP:
        stamp = ["v_mov_b32_dpp v242, v242 wave_shr:1 row_mask:0xf bank_mask:0xf",
                 "v_mov_b32_dpp v243, v243 wave_shr:1 row_mask:0xf bank_mask:0xf",
                 "v_writelane_b32 v242, s50, 0", "v_writelane_b32 v243, s52, 0",
                 "s_memtime s[50:51]", "s_memrealtime s[52:53]"]
        nb = []
        for l in body:
            if not (l == "s_barrier" and C.NOBAR): nb.append(l)
            if l == "s_barrier": nb += stamp
        w0 = ["s_waitcnt lgkmcnt(0)"]
        nb += w0 + stamp + ["s_waitcnt vmcnt(0)"] + w0 + stamp + w0 + stamp + w0
        nb += ["s_load_dwordx2 s[56:57], s[0:1], 40", "s_waitcnt lgkmcnt(0)", "s_and_b32 s57, s57, 0xffff",
               "s_mov_b32 s58, 0x1000000", "s_mov_b32 s59, 0x20000",
               "s_lshl_b32 s54, s2, 2", "s_add_u32 s54, s54, s34", "s_lshl_b32 s54, s54, 9",
               "v_mbcnt_lo_u32_b32 v0, -1, 0", "v_mbcnt_hi_u32_b32 v0, -1, v0", "v_lshlrev_b32_e32 v0, 3, v0",
               "buffer_store_dwordx2 v[242:243], v0, s[56:59], s54 offen", "s_waitcnt vmcnt(0)"]
        body = nb
        pre = pre.replace("    s_load_dwordx4 s[4:7], s[0:1], 0\n", "    s_memtime s[50:51]\n    s_memrealtime s[52:53]\n    v_mov_b32_e32 v242, 0\n    v_mov_b32_e32 v243, 0\n    s_load_dwordx4 s[4:7], s[0:1], 0\n")
    if C.SPIN >= 0:
        nb = []
        for l in body:
            nb.append(l)
            if l == "s_barrier":
                nb += ["s_add_u32 s60, s60, 1", f"s_cmp_lg_u32 s60, {C.SPIN}", "s_cbranch_scc1 1f".replace("1f", f"L_sp{len(nb)}"), "s_memrealtime s[52:53]", f"L_sp{len(nb)}:"]
        nb += ["s_waitcnt vmcnt(0)"]
        if C.SPIN == 99: nb += ["s_memrealtime s[52:53]"]
        nb += ["s_waitcnt lgkmcnt(0)", "s_sub_u32 s54, s52, s50", f"s_mul_i32 s54, s54, {C.SPINK}", f"s_add_u32 s54, s54, {C.SPINB}",
               "L_spin:", "s_memrealtime s[52:53]", "s_waitcnt lgkmcnt(0)", "s_sub_u32 s55, s52, s50", "s_cmp_lt_u32 s55, s54", "s_cbranch_scc1 L_spin"]
        body = nb
        pre = pre.replace("    s_load_dwordx4 s[4:7], s[0:1], 0\n", "    s_memrealtime s[50:51]\n    s_mov_b32 s60, 0\n    s_mov_b32 s52, 0\n    s_load_dwordx4 s[4:7], s[0:1], 0\n")
    from slow import slow_path
    slow = slow_path(locals())
    hdr = open("standalone__mha_softmax__near_ridge.s.ref").read().split("; Override launch")[0]
    txt = hdr + f"; @launch grid=(256,1,1) block=(256,1,1) lds={LDS}\n"
    txt += f""".amdgcn_target "amdgcn-amd-amdhsa--gfx950"
.text
.globl {KNAME}
.p2align 8
.type {KNAME},@function
{KNAME}:"""
    txt += pre
    for l in body:
        for x in l.split("\n"):
            txt += (x if x.endswith(":") or x.startswith("    ") else "    " + x) + "\n"
    txt += slow
    txt += f"""L_end:
    s_endpgm
.section .rodata,"a"
.p2align 6
.amdhsa_kernel {KNAME}
  .amdhsa_next_free_vgpr 512
  .amdhsa_next_free_sgpr 64
  .amdhsa_accum_offset 256
  .amdhsa_group_segment_fixed_size 0
  .amdhsa_kernarg_size 48
  .amdhsa_user_sgpr_count 2
  .amdhsa_user_sgpr_kernarg_segment_ptr 1
  .amdhsa_system_sgpr_workgroup_id_x 1
  .amdhsa_float_denorm_mode_32 3
.end_amdhsa_kernel
"""
    return txt

if __name__ == "__main__":
    cfg = Cfg()
    outp = sys.argv[1]
    for a in sys.argv[2:]:
        k, v = a.split("=", 1)
        old = getattr(cfg, k)
        setattr(cfg, k, (" " + v if v else "") if isinstance(old, str) else type(old)(eval(v)))
    open(outp, "w").write(generate(cfg))
```

```python
import bisect, collections
import numpy as np

class Op:
    __slots__ = ("text","kind","reads","writes","pos","earliest","latest","idx","preds","succs",
                 "asap","alap","done","t","n","units","tag","creads","seq","nlines","prio","cnt_idx")
    def __init__(self, text, kind, reads=(), writes=(), pos=None, earliest=None, latest=None,
                 tag="", creads=(), units=None):
        self.text, self.kind = text, kind
        self.reads, self.writes = list(reads), list(writes)
        self.creads = set(creads)
        self.pos = pos
        self.earliest, self.latest = earliest, latest
        self.preds, self.succs = [], []
        self.done = False
        self.tag = tag
        self.nlines = text.count("\n") + 1
        self.units = units if units is not None else {"E":2,"V":1,"D":1,"G":2,"S":0,"B":0,"M16":0,"M4":0,"M32":0,"MS":0}[kind]
    def is_mfma(self): return self.kind[0] == "M"
    def is_valu(self): return self.kind in ("E","V")

PASSES = {"M4":2, "M16":4, "M32":8, "MS":4}
CYC = {"M4":8, "M16":16, "M32":32, "MS":16}
HOLD = {"M4":4, "M16":8, "M32":8, "MS":12}
WS_D_USE = {2:5, 4:8, 8:12}
WS_D_C_SAME = {2:2, 4:0, 8:0}
WS_D_C_OVL = {2:4, 4:6, 8:10}
WS_C_WAR = {2:1, 4:3, 8:7}

def isreg(r): return r[0] in "va" and r[1:].isdigit()

def edge_req(p, c, typ, reg):
    if not isreg(reg):
        if reg == "m0" and typ == "RAW" and c.kind in ("G","D"): return 1, None
        if typ == "RAW" and p.kind == "G": return 0, "vm"
        if typ == "WAR" and p.kind == "D" and c.kind != "D": return 0, "lgkm"
        if typ == "WAW" and p.kind == "D" and c.kind == "G": return 0, "lgkm"
        if typ == "WAW" and p.kind == "G" and c.kind == "D": return 0, "vm"
        if typ == "RAW" and p.is_valu() and reg[0] == "s":
            return (5 if c.kind == "G" else 3), None
        return 0, None
    if p.is_mfma():
        ps = PASSES[p.kind]
        if typ in ("RAW","WAW"):
            if c.is_mfma():
                if typ == "RAW" and reg in c.creads:
                    same = (c.kind == p.kind and sorted(c.creads) == sorted(p.writes))
                    return (WS_D_C_SAME if same else WS_D_C_OVL)[ps], None
                if typ == "RAW": return WS_D_USE[ps], None
                return (0 if c.kind == p.kind else WS_D_USE[ps]), None
            return WS_D_USE[ps], None
        else:
            if reg in p.creads and not c.is_mfma(): return WS_C_WAR[ps], None
            if reg in p.creads and c.is_mfma() and c.kind != p.kind: return WS_C_WAR[ps], None
            return 0, None
    if p.kind == "D":
        if p.tag == "fat":
            return (2 if (typ == "RAW" and c.is_mfma()) else 0), None
        if typ in ("RAW","WAW"): return 0, "lgkm"
        return (2 if p.tag == "dsw" else 0), None
    if p.kind == "G":
        if typ in ("RAW","WAW"): return 0, "vm"
        return 2, None
    if p.is_valu():
        if typ == "RAW":
            if c.is_mfma(): return 2, None
            if "permlane" in c.text: return 2, None
            if "readfirstlane" in c.text or "readlane" in c.text: return 1, None
            if p.kind == "E" and "permlane" not in p.text: return 1, None
            return 0, None
        return 0, None
    return 0, None

class Sched:
    def __init__(self, ds_lat=10, maxcap=6, margin=0, lds_backlog=16, lds_scale=1.0, lazy=0, bigslack=6, ext=0, stgap=120):
        self.ops = []
        self.lastw = {}
        self.readers = collections.defaultdict(list)
        self.ds_lat = ds_lat
        self.maxcap = maxcap
        self.margin = margin
        self.ext = ext; self.stgap = stgap; self.lazy = lazy; self.bigslack = bigslack
        self.lds_backlog = lds_backlog; self.lds_scale = lds_scale
    def add(self, op):
        op.seq = len(self.ops)
        deps = {}
        def dep(p, typ, reg):
            if p is op: return
            ws, wt = edge_req(p, op, typ, reg)
            o = deps.get(p, (0, None))
            deps[p] = (max(o[0], ws), wt or o[1])
        for r in op.reads:
            if r in self.lastw: dep(self.lastw[r], "RAW", r)
        for r in op.writes:
            if r in self.lastw: dep(self.lastw[r], "WAW", r)
            for p in self.readers[r]: dep(p, "WAR", r)
        for r in op.reads: self.readers[r].append(op)
        for r in op.writes:
            self.lastw[r] = op
            self.readers[r] = [op] if r in op.reads else []
        for p,(ws,wt) in deps.items():
            op.preds.append((p,ws,wt)); p.succs.append((op,ws,wt))
        self.ops.append(op)
        return op

    def run(self):
        mf = sorted([o for o in self.ops if o.is_mfma()], key=lambda o:(o.pos,o.seq))
        for i,o in enumerate(mf): o.idx = i
        self.mf = mf
        N = len(mf)
        fill = [o for o in self.ops if not o.is_mfma()]
        for o in mf:
            for p,ws,wt in o.preds:
                if p.is_mfma() and p.idx >= o.idx:
                    raise Exception(f"MFMA order violates dep: {p.text} -> {o.text}")
        def ref(x):
            if x is None: return None
            if isinstance(x, tuple): return x[0].idx + x[1]
            return x
        def gaps_for(p, ws):
            need = 4*(ws+1)
            if ws == 0: return 0
            t = 0; i = p.idx
            while True:
                if t + HOLD[mf[i].kind] >= need or i+1 >= N: return i - p.idx
                t += CYC[mf[i].kind]; i += 1
        for o in self.ops:
            if o.is_mfma(): o.asap = o.idx; continue
            a = -1
            for p,ws,wt in o.preds:
                if p.is_mfma(): a = max(a, p.idx + gaps_for(p, ws))
                else: a = max(a, p.asap)
            e = ref(o.earliest)
            if e is not None: a = max(a, min(e, N-1))
            o.asap = a
        for o in reversed(self.ops):
            if o.is_mfma(): o.alap = o.idx; continue
            l = float(N-1+self.ext)
            for c,ws,wt in o.succs:
                if c.is_mfma():
                    x = c.idx - 1
                    if ws >= 1: x -= 1
                    if wt == "lgkm": x -= self.ds_lat
                    if wt == "vm": x -= 2
                else:
                    x = c.alap
                    if wt == "lgkm": x -= self.ds_lat
                    elif wt == "vm": x -= 1
                    elif c.kind in ("G","D","S","B") : x -= 1
                    elif ws >= 1: x -= 1
                    else: x -= 0.5*max(o.units,0.0)
                l = min(l, x)
            e = ref(o.latest)
            if e is not None: l = min(l, e)
            o.prio = l
            o.alap = l
        for o in self.ops:
            if not o.is_mfma():
                o.alap = max(o.alap, o.asap)
        out = []
        self.out = out
        st = dict(t=0, n=0, pipe=0, vfree=0, lastvalu=False, lds=0, laststore=-999)
        def ldscost(o):
            return self.lds_scale * (8 if ("b64" in o.text or "b32" in o.text.split()[0]) else (32 if "write" in o.text else 16))
        tl = dict(t=0)
        dsq = []; vmq = []
        cov = dict(lgkm=0, vm=0)
        stats = collections.Counter()
        gapmark = []
        def emit_raw(text, op=None, kind="S"):
            t = st["t"]
            if kind[0] == "M":
                t = max(t, st["pipe"], st["vfree"])
                st["pipe"] = t + CYC[kind]; st["vfree"] = t + HOLD[kind]; st["t"] = t + 4; st["lastvalu"] = False
            elif kind in ("E","V"):
                t = max(t, st["vfree"]); d = 8 if kind == "E" else 4
                st["t"] = t + d; st["vfree"] = t + d; st["lastvalu"] = True
            elif kind in ("D","G"):
                t = max(t, st["vfree"])
                if st["lastvalu"]: t += 8; stats["mem_after_valu"] += 1
                d = 4*op.units
                if kind == "G" and "store" in text: st["laststore"] = t; d += 16
                if kind == "D": st["lds"] = max(st["lds"], t) + ldscost(op)
                st["t"] = t + d; st["vfree"] = t + d; st["lastvalu"] = (op.tag == "fat")
            else:
                nl = text.count("\n") + 1
                st["t"] = t + 4*nl + ((20 if "barrier" in text else 4) if kind == "B" else 0)
            if op is not None:
                op.t = t; op.n = len(out); op.done = True
                if kind == "D": op.cnt_idx = len(dsq); dsq.append(op)
                if kind == "G": op.cnt_idx = len(vmq); vmq.append(op)
            out.append((text, op, kind))
        def states_since(p):
            if not p.is_mfma():
                s = 0
                for (text,op,kind) in out[p.n+1:]:
                    if text.startswith("s_nop"): s += int(text.split()[1]) + 1
                    else: s += text.count("\n")+1
                    if s > 24: break
                return s
            t = 4; pipe = CYC[p.kind]
            for (text,op,kind) in out[p.n+1:]:
                if kind[0] == "M":
                    t = max(t, pipe); pipe = t + CYC[kind]; t += 4
                elif text.startswith("s_nop"): t += 4*(int(text.split()[1]) + 1)
                else: t += 4*(text.count("\n")+1)
                if t > 120: break
            return t//4 - 1
        def need_ws(o):
            k = 0
            for p,ws,wt in o.preds:
                if ws > 0:
                    m = self.margin if p.is_mfma() and ws >= 5 else 0
                    k = max(k, ws + m - states_since(p))
            return k
        def need_wait(o):
            lg = vm = None
            for p,ws,wt in o.preds:
                if wt == "lgkm" and p.cnt_idx >= cov["lgkm"]: lg = max(lg or 0, p.cnt_idx+1)
                if wt == "vm" and p.cnt_idx >= cov["vm"]: vm = max(vm or 0, p.cnt_idx+1)
            return lg, vm
        def emit_wait(lg, vm):
            parts = []
            if vm is not None:
                n = min(len(vmq) - vm, 63); parts.append(f"vmcnt({n})"); cov["vm"] = len(vmq) - n
            if lg is not None:
                k = lg
                while k < len(dsq) and st["t"] - dsq[k].t >= 16*self.ds_lat + 32: k += 1
                if st["t"] - dsq[lg-1].t < 16*self.ds_lat*0.6: stats["short_ds"] += 1
                n = min(len(dsq) - k, 15); parts.append(f"lgkmcnt({n})"); cov["lgkm"] = len(dsq) - n
            emit_raw("s_waitcnt " + " ".join(parts))
            stats["waits"] += 1
        def emit(o):
            lg, vm = need_wait(o)
            if lg is not None or vm is not None: emit_wait(lg, vm); stats["late_wait"] += 1
            k = need_ws(o)
            if k > 0:
                emit_raw(f"s_nop {k-1}"); st["t"] += 4*(k-1); stats["nop_states"] += k
            emit_raw(o.text, o, o.kind)
        def force(o):
            if o.done: return
            for p,ws,wt in sorted(o.preds, key=lambda x:x[0].seq):
                if not p.done:
                    if p.is_mfma(): raise Exception(f"infeasible: {o.text} needs MFMA {p.text} idx {p.idx}")
                    force(p)
            emit(o)
            stats["forced"] += 1
        pend = sorted(fill, key=lambda o:(o.asap,o.seq))
        pi = 0
        active = []
        byalap = sorted(fill, key=lambda o:o.alap)
        alaps = [o.alap for o in byalap]
        lo = 0
        capg = [ (CYC[m.kind]-HOLD[m.kind])//4 for m in mf ]
        cum = [0]
        for c in capg: cum.append(cum[-1]+c)
        cumn = np.array(cum, dtype=float)
        def ready(o, i):
            if o.kind == "G" and "store" in o.text and st["t"] - st["laststore"] < self.stgap and o.alap >= i+1: return False
            for p,ws,wt in o.preds:
                if not p.done: return False
                if wt == "lgkm" and p.cnt_idx >= cov["lgkm"] and st["t"] - p.t < 112 and o.alap >= i+1: return False
            return True
        for i in range(-1, N):
            if i >= 0:
                m = mf[i]
                for p,ws,wt in sorted(m.preds, key=lambda x:x[0].seq):
                    if not p.done: force(p)
                gapmark.append(len(out))
                emit(m)
            while pi < len(pend) and pend[pi].asap <= i:
                active.append(pend[pi]); pi += 1
            active = [o for o in active if not o.done]
            active.sort(key=lambda o:(o.prio,o.seq))
            if i == -1 or i == N-1:
                for o in sorted(active, key=lambda o:o.seq):
                    if i == N-1 or o.alap < 0: force(o)
                continue
            while lo < len(byalap) and byalap[lo].done: lo += 1
            W = min(140, N - i)
            H = np.zeros((W+1, W))
            for k in range(lo, len(byalap)):
                o = byalap[k]
                if o.alap >= i + W: break
                if o.done or not o.units: continue
                H[max(o.asap - i, 0), max(int(o.alap) - i, 0)] += min(o.units, 2) if self.lazy else o.units
            Dm = np.cumsum(np.cumsum(H[::-1], axis=0)[::-1], axis=1)
            cw = cumn[i:i+W+1]
            capad = cw[None,1:] - cw[:,None]
            ex = np.maximum(Dm - np.maximum(capad, 0), 0)
            L = ex[1:].max(axis=0)
            need = int((Dm[0] - capad[1] - L).max())
            if self.lazy:
                extra = self.lazy * np.arange(W)
                need = min(need, int(np.ceil((Dm[0] - capad[1] - extra).max())))
            cap = max(capg[i], min(need, self.maxcap))
            used = 0
            sfree = True
            nxt = mf[i+1]
            if all(p.done for p,ws,wt in nxt.preds if wt):
                lg, vm = need_wait(nxt)
                if lg is not None or vm is not None:
                    emit_wait(lg, vm); sfree = False
            for o in active:
                if o.kind in ("S","B") and not o.done and ready(o,i) and need_ws(o) == 0:
                    lg, vm = need_wait(o)
                    if sfree and (lg is not None or vm is not None):
                        emit_wait(lg, vm); sfree = False
                        if o.tag == "fence": o.t = st["t"]; o.n = len(out)-1; o.done = True
                        continue
                    if o.tag == "fence" and lg is None and vm is None:
                        o.t = st["t"]; o.n = len(out)-1; o.done = True; continue
                    if sfree or o.alap < i+1:
                        if o.units and used + o.units > cap and o.alap >= i+1: continue
                        if not sfree: used += 1
                        emit(o); used += o.units; sfree = False
            cand = [o for o in active if o.kind not in ("S","B")]
            valu_started = False
            def pick():
                r = [o for o in cand if not o.done and ready(o,i) and need_ws(o) == 0
                     and not (valu_started and o.kind in ("D","G") and o.alap >= i+1)]
                return r
            r = pick()
            chosen = []; u = used
            lb = max(st["lds"] - (mf[i].t + HOLD[mf[i].kind]), 0)
            big = [o for o in r if o.units > 2]
            for o in r:
                if o.units > 2: continue
                if o.kind == "D" and lb > self.lds_backlog and o.alap >= i+1: continue
                if o.kind == "G" and "store" in o.text and o.alap >= i+1 and any("store" in c_.text for c_ in chosen): continue
                if u + o.units <= cap or o.alap < i+1:
                    chosen.append(o); u += o.units
                    if o.kind == "D": lb += ldscost(o) - 4
            if big:
                b0 = big[0]
                urgent = any(o.alap < i+2 for o in chosen)
                if b0.alap < i+1 or (not urgent and capg[i] >= 2 and (u < capg[i] or b0.alap < i + self.bigslack)):
                    chosen = [o for o in chosen if o.alap < i+1] + [b0]
                    u = used + sum(o.units for o in chosen)
            if u < cap and len(chosen) == 1 and chosen[0].units == 1 and chosen[0].alap >= i+2 and cap - used == 2:
                two = [o for o in r if o.units == 2]
                follow = any((not c.is_mfma()) and c.kind == "V" and ws == 0 and c.asap <= i and
                             all(p.done or p is chosen[0] for p,_,_ in c.preds) for c,ws,wt in chosen[0].succs)
                if two and not follow: chosen = [two[0]]
            for o in sorted(chosen, key=lambda o: o.tag == "fat"):
                if o.kind in ("D","G"):
                    emit(o); used += o.units
            valu_started = True
            for o in chosen:
                if o.kind not in ("D","G") and need_ws(o) == 0:
                    emit(o); used += o.units
            while True:
                r = [o for o in pick() if used + o.units <= cap or o.alap < i+1]
                if not r: break
                emit(r[0]); used += r[0].units
        assert all(o.done for o in self.ops)
        self.gapmark = gapmark
        self.stats = stats
        self.total = st["t"]
        return out
```

```python
import sys, struct, math, argparse
from sched import Op, Sched

KNAME = "standalone__mha_softmax__near_ridge_kernel"

def f2u(x): return struct.unpack("<I", struct.pack("<f", x))[0]
def bf16_rne(x):
    u = f2u(x); u = (u + 0x7fff + ((u >> 16) & 1)) >> 16
    return u
def bf2f(h): return struct.unpack("<f", struct.pack("<I", h << 16))[0]

class Cfg:
    LAG = 5; NS = 4; NP = 2; DSLAT = 10; MAXCAP = 6; MARGIN = 1
    KPAD = 32; VPAD = 8
    USE_M0 = True
    NPASS = 4
    QNT = " nt"; ONT = " sc0 sc1"; KVNT = " nt"
    STAMP = False
    ROLL = True
    PK = False
    PD = 3
    ONTL = " sc0 sc1"; ONTQ = 0
    DROPL = True
    RTMAX = False
    EXT = 60; TL = 22; TD = 4
    LAZY = 1.5; BIGS = 6
    VIEW = ""
    FLG = True; ARR = 9; CHK = -2; SH = 4; FAT = True; OPAD = True
    RD = 8; VBAR = 8; KBAR = 10; QFIRST = False; SPLITV1 = True
    LIN = True
    ST0 = -10; STD = 6
    HS = 6
    CPF2 = 0
    PADN = 0
    LDSB = 4; LDSS = 1.0; SMF = True; CPF = 2; FINE = False
    NOBAR = False
    DROP = ""
    DBG = False
    DUMMY0 = 1
    QT0 = 11; QPER = 27; QLAT = 19; WU = 5
    THR = 2.0**40
    FORCE_SLOW = False
    SPIN = -1
    SPINK = 0
    SPINB = 15000

def vr(a, n=1): return [f"v{a+i}" for i in range(n)]
def ar(a, n=1): return [f"a{a+i}" for i in range(n)]
def rng(regs):
    p = regs[0][0]; a = int(regs[0][1:])
    return regs[0] if len(regs) == 1 else f"{p}[{a}:{a+len(regs)-1}]"

def generate(cfg):
    C = cfg
    KB = 1024 + C.KPAD; VB = 1024 + C.VPAD
    KS = 1024
    KSLOT = 16*KB; VSLOT = 16*VB; VS = KS + 4*KSLOT
    SS = VS + 4*VSLOT
    OROW = 272
    STG = 16*OROW if C.OPAD else 4*KB
    LDS = SS + 4*STG
    O  = lambda qb, db: vr(qb*32 + db*4, 4)
    Qp = lambda qb, ks: vr(128 + qb*16 + ks*4, 4)
    Cm = lambda qb: vr(192 + qb*4, 4)
    SB = 208; PB = SB + 4*C.NS
    St = lambda n: vr(SB + (n % C.NS)*4, 4)
    Pb = lambda ph, ks: vr(PB + (ph % C.NP)*8 + ks*4, 4)
    MISC = PB + 8*C.NP
    assert MISC <= 248
    TMP = vr(248, 4)
    vK, vV, vD, vQ = "v252", "v253", "v254", "v255"
    vS, vL = "v246", "v247"
    vI, vF, vW = "v245", "v244", "v242"
    sCnt, sFW = "s44", "s45"
    sWS = "s27"
    Kf = lambda kb, ks: ar(kb*16 + ks*4, 4)
    Vf = lambda db, ks: ar(64 + db*8 + ks*4, 4)
    Qr = lambda qb, ks: ar(128 + qb*16 + ks*4, 4)
    Lq = lambda qb: ar(192 + qb*4, 4)
    ONES = ar(208, 4); AHI = ar(212, 2); ALO = ar(214, 2)
    sQ, sK, sV, sO = "s[4:7]", "s[8:11]", "s[12:15]", "s[16:19]"
    sKV, sQo, sOo, sWK, sWV, sPass, sThr = "s20", "s21", "s22", "s23", "s24", "s25", "s26"
    sFail = "s[28:29]"; sT = ["s[30:31]", "s[32:33]"]
    c = math.log2(math.e) / math.sqrt(128.0)
    chi = bf16_rne(c); clo = bf16_rne(c - bf2f(chi))

    S = Sched(ds_lat=C.DSLAT, maxcap=C.MAXCAP, margin=C.MARGIN, lds_backlog=C.LDSB, lds_scale=C.LDSS, lazy=C.LAZY, bigslack=C.BIGS, ext=C.EXT)
    A = S.add
    NSTEP = 8*C.NPASS
    Tm = {}; Gm = {}
    def m16(D, a, b, c_, pos, tag=""):
        cs = "0" if c_ is None else rng(c_)
        return A(Op(f"v_mfma_f32_16x16x32_bf16 {rng(D)}, {rng(a)}, {rng(b)}, {cs}", "M16",
                    reads=a+b+(c_ or []), writes=D, pos=pos, creads=(c_ or []), tag=tag))
    def m4(D, a, b, c_, pos):
        cs = "0" if c_ is None else rng(c_)
        return A(Op(f"v_mfma_f32_4x4x4_16b_bf16 {rng(D)}, {rng(a)}, {rng(b)}, {cs}", "M4",
                    reads=a+b+(c_ or []), writes=D, pos=pos, creads=(c_ or [])))
    def V(text, r, w, kind="V", **kw): return A(Op(text, kind, reads=r, writes=w, **kw))

    class Later:
        def __init__(s, d, k): s.d, s.k = d, k
        @property
        def idx(s):
            k = s.k
            while k not in s.d: k -= 1
            return s.d[k].idx
    def atT(n, off=0): return (Later(Tm, n), off)

    Ld = lambda w, sig: [f"L{w}{sig%4}_{j}" for j in range(4)]
    def dma(sig, which, j, earliest=None, latest=None):
        slot = sig % 4
        if which == "K": base, m0imm, srd = sWK, slot*KSLOT + j*C.KPAD, sK
        else:            base, m0imm, srd = sWV, slot*VSLOT + j*C.VPAD, sV
        e2 = (earliest[0], earliest[1]-2) if isinstance(earliest, tuple) else earliest
        A(Op(f"s_add_u32 m0, {base}, {m0imm}", "S", reads=[], writes=["m0"], earliest=e2))
        off = f" offset:{j*1024}" if j else ""
        return A(Op(f"buffer_load_dwordx4 {vD}, {srd}, {sKV} offen{off}{C.KVNT} lds", "G",
             reads=["m0", "sKV", "nrKV", f"free{which}{slot}"], writes=[f"L{which}{slot}_{j}"],
             earliest=earliest, latest=latest))
    def kvadv(sig):
        if sig % 8 == 7:
            A(Op(f"s_add_u32 {sKV}, {sKV}, {(1<<(17+C.HS)) - 7*16384}", "S", reads=["sKV"], writes=["sKV"]))
            A(Op(f"s_and_b32 {sKV}, {sKV}, s49", "S", reads=["sKV","sM"], writes=["sKV"]))
            A(Op(f"s_and_b32 s10, s10, s49", "S", reads=["sM","nrKV"], writes=["nrKV"]))
            A(Op(f"s_and_b32 s14, s14, s49", "S", reads=["sM","nrKV"], writes=["nrKV"]))
        else:
            A(Op(f"s_add_u32 {sKV}, {sKV}, 16384", "S", reads=["sKV"], writes=["sKV"]))
    def qload(qb, earliest=None, latest=None):
        for ks in range(4):
            off = f" offset:{ks*64}" if ks else ""
            e = (earliest[0], earliest[1] + 3*ks) if isinstance(earliest, tuple) else earliest
            A(Op(f"buffer_load_dwordx4 {rng(Qr(qb,ks))}, {vQ}, {sQ}, {sQo} offen{off}{C.QNT}", "G",
                 reads=["sQo","nrQ",vQ], writes=Qr(qb,ks), earliest=e, latest=latest))
        if qb < 3:
            A(Op(f"s_add_u32 {sQo}, {sQo}, 4096", "S", reads=["sQo"], writes=["sQo"]))
    def qdma(qb, j, t):
        e = atT(t)
        A(Op(f"s_add_u32 m0, {sWS}, {j*C.KPAD}", "S", reads=[], writes=["m0"], earliest=(e[0], -2)))
        off = f" offset:{j*1024}" if j else ""
        A(Op(f"buffer_load_dwordx4 {vD}, {sQ}, {sQo} offen{off}{C.QNT} lds", "G",
             reads=["m0", "sQo", "nrQ"], writes=[f"ST{j}"], earliest=e, latest=(e[0], 24)))
        if qb < 3 and j == 3:
            A(Op(f"s_add_u32 {sQo}, {sQo}, 4096", "S", reads=["sQo"], writes=["sQo"]))
    def qreads(qb, t0):
        A(Op("s_nop 0", "S", reads=[f"ST{j}" for j in range(4)], writes=["STrdy"], earliest=atT(t0), latest=atT(t0, 6), tag="fence"))
        for ks in range(4):
            A(Op(f"ds_read_b128 {rng(Qr(qb,ks))}, {vS} offset:{ks*256}", "D",
                 reads=["STrdy"] + [f"ST{j}" for j in range(4)], writes=Qr(qb,ks), latest=atT(t0, 14)))
    def ostores(qb, t0, dt):
        for i in range(4):
            off = f" offset:{i*1024}" if i else ""
            e = atT(t0 + dt*i) if t0 is not None else None
            lt = (e[0], 30) if e else (Gm[4*(4*(NSTEP-1) + qb) + 3], C.TL + C.TD*i)
            A(Op(f"buffer_store_dwordx4 {rng(Qr(qb,i))}, {vQ if C.LIN else vD}, {sO}, {sOo} offen{off}{C.ONTL if (t0 is None and qb >= C.ONTQ) else C.ONT}", "G",
                 reads=Qr(qb,i) + ["sOo", "nrO", vQ], writes=[], earliest=e, latest=lt))
        if qb < 3:
            A(Op(f"s_add_u32 {sOo}, {sOo}, 4096", "S", reads=["sOo"], writes=["sOo"]))
        elif t0 is not None:
            A(Op(f"s_add_u32 {sOo}, {sOo}, s48", "S", reads=["sOo", "s48_"], writes=["sOo"]))
            A(Op(f"s_mov_b32 s48, {(1<<(18+C.HS)) - 3*4096}", "S", reads=[], writes=["s48_"]))
            A(Op(f"s_mov_b32 s18, 0x4000000", "S", reads=[], writes=["nrO"]))
    def qadv(t):
        e = atT(t) if t > 0 else None
        A(Op(f"s_ashr_i32 s49, {sPass}, 31", "S", reads=["sPass"], writes=["sM"], earliest=e))
        A(Op(f"s_add_u32 {sQo}, {sQo}, {(1<<(18+C.HS)) - 3*4096}", "S", reads=["sQo"], writes=["sQo"], earliest=e))
        A(Op(f"s_and_b32 {sQo}, {sQo}, s49", "S", reads=["sQo","sM"], writes=["sQo"]))
        A(Op(f"s_and_b32 s6, s6, s49", "S", reads=["sM","nrQ"], writes=["nrQ"]))
    def barrier(name, need, frees, gives, earliest=None, latest=None):
        return A(Op("s_barrier", "B", reads=need, writes=frees + [f.replace("free","use") for f in frees] + gives + ["barorder"], earliest=earliest, latest=latest, tag=name))
    def arrive(sig):
        sl = sig % 4
        t = 16*sig + C.ARR
        A(Op(f"s_add_u32 {sCnt}, {sCnt}, 1", "S", reads=["sCnt"], writes=["sCnt"], earliest=atT(t-2)))
        V(f"v_mov_b32_e32 {vF}, {sCnt}", ["sCnt"], [vF], earliest=atT(t-1))
        A(Op("s_nop 0", "S", reads=Ld("K",sig+1) + Ld("V",sig+1), writes=["arr"], earliest=atT(t,-3), latest=atT(t,2), tag="fence"))
        A(Op(f"s_mov_b32 m0, {sFW}", "S", reads=[], writes=["m0"], earliest=atT(t,-2)))
        A(Op(f"ds_write_addtid_b32 {vF}", "D", reads=["arr", "m0", vF], writes=[f"useK{sl}", f"useV{sl}", "flag"], earliest=atT(t), latest=atT(t,4), tag="flagw"))
    def check(sig):
        sl = sig % 4; e = atT(16*sig + 12, C.CHK)
        A(Op(f"ds_read_b32 {vF}, {vQ}", "D", reads=["flag", vQ], writes=[vF], earliest=(e[0], e[1]-9), latest=(e[0], e[1]-8), tag="flagr"))
        A(Op("s_nop 0", "S", reads=[vF], writes=["fr"], earliest=(e[0], e[1]-3), tag="fence"))
        V(f"v_cmp_gt_u32_e32 vcc, {sCnt}, {vF}", ["sCnt", vF, "fr"], ["s_vcc"], earliest=(e[0], e[1]-2), latest=(e[0], e[1]+1))
        A(Op("s_cbranch_vccnz @CHK", "B", reads=["s_vcc", "sCnt", vF], writes=[f"freeK{sl}", f"freeV{sl}", f"rdyK{(sig+1)%4}", f"rdyV{(sig+1)%4}", "barorder"], earliest=e, tag="chk"))
    def kreads(sig, latest=None):
        slot = sig % 4
        for kb in range(4):
            for ks in range(4):
                A(Op(f"ds_read_b128 {rng(Kf(kb,ks))}, {vK} offset:{slot*KSLOT + kb*4*KB + ks*256}", "D",
                     reads=[f"rdyK{slot}", f"useK{slot}"], writes=Kf(kb,ks), latest=latest))
    def vreads(sig):
        slot = sig % 4
        for db in range(8):
            j, u = db >> 1, db & 1
            for ks in range(2):
                for t in range(2):
                    d = Vf(db,ks)[2*t:2*t+2]
                    A(Op(f"ds_read_b64_tr_b16 {rng(d)}, {vV} offset:{slot*VSLOT + (8*ks+4*t)*VB + j*256 + 8*u}", "D",
                         reads=[f"rdyV{slot}", f"useV{slot}"], writes=d))
    def prescale(qb, pos):
        q = sum((Qp(qb,ks) for ks in range(4)), [])
        raw = sum((Qr(qb,ks) for ks in range(4)), [])
        ta, tb = Cm(qb), TMP
        temps = [q[8:12], ta, q[12:16], tb]*2
        for i in range(8):
            t = temps[i]; b = raw[2*i:2*i+2]
            mm = m4(t, AHI, b, None, pos + (2*i,))
            if i == 0: first = mm
            m4(t, ALO, b, t, pos + (2*i+3,))
            V(f"v_cvt_pk_bf16_f32 {q[2*i]}, {t[0]}, {t[1]}", t[0:2], [q[2*i]])
            V(f"v_cvt_pk_bf16_f32 {q[2*i+1]}, {t[2]}, {t[3]}", t[2:4], [q[2*i+1]])
        return first
    def phase(sig, qb):
        p, s = divmod(sig, 8)
        ph = 4*sig + qb
        cm = Cm(qb)
        for kb in range(4):
            n = 4*ph + kb
            st = St(n)
            zero = (not C.USE_M0) or (s == 0 and kb < 2)
            for ks in range(4):
                mm = m16(st, Kf(kb,ks), Qp(qb,ks), (None if zero else cm) if ks == 0 else st, (n, 0, ks))
                if ks == 0: Tm[n] = mm
            if C.USE_M0 and s == 0 and kb == 0:
                V(f"v_max3_f32 {cm[0]}, {st[0]}, {st[1]}, {st[2]}", st[0:3], [cm[0]])
                V(f"v_max_f32_e32 {cm[1]}, {cm[0]}, {st[3]}", [cm[0], st[3]], [cm[1]])
                V(f"v_max_f32_e32 {cm[0]}, {cm[0]}, {st[3]}", [cm[0], st[3]], [cm[0]])
                V(f"v_permlane32_swap_b32_e32 {cm[0]}, {cm[1]}", cm[0:2], cm[0:2], kind="E")
                V(f"v_max_f32_e32 {cm[2]}, {cm[0]}, {cm[1]}", cm[0:2], [cm[2]])
                V(f"v_max_f32_e32 {cm[3]}, {cm[0]}, {cm[1]}", cm[0:2], [cm[3]])
                V(f"v_permlane16_swap_b32_e32 {cm[2]}, {cm[3]}", cm[2:4], cm[2:4], kind="E")
                V(f"v_min_f32_e64 {cm[0]}, -{cm[2]}, -{cm[3]}", cm[2:4], [cm[0]])
                V(f"v_min_f32_e64 {cm[1]}, -{cm[2]}, -{cm[3]}", cm[2:4], [cm[1]])
                V(f"v_mov_b32_e32 {cm[2]}, {cm[0]}", [cm[0]], [cm[2]])
                V(f"v_mov_b32_e32 {cm[3]}, {cm[0]}", [cm[0]], [cm[3]])
            pr = Pb(ph, kb >> 1)[2*(kb & 1): 2*(kb & 1) + 2]
            for h in range(2):
                for r in (2*h, 2*h+1):
                    if C.USE_M0 and zero:
                        V(f"v_add_f32_e32 {st[r]}, {cm[0]}, {st[r]}", [cm[0], st[r]], [st[r]])
                    V(f"v_exp_f32_e32 {st[r]}, {st[r]}", [st[r]], [st[r]], kind="E")
                V(f"v_cvt_pk_bf16_f32 {pr[h]}, {st[2*h]}, {st[2*h+1]}", st[2*h:2*h+2], [pr[h]])
        for j in range(4):
            m = 4*ph + j
            if j == 0 and C.SMF:
                if s == 0:
                    for r in range(2): V(f"v_accvgpr_write_b32 {Lq(qb)[r]}, 0", [], [Lq(qb)[r]])
                pp = Pb(ph,0) + Pb(ph,1)
                A(Op(f"v_smfmac_f32_16x16x64_bf16 {rng(Lq(qb))}, {rng(ONES)}, {rng(pp)}, {vI}", "MS",
                     reads=ONES + pp + Lq(qb), writes=Lq(qb), pos=(m + C.LAG, 1, 8), creads=Lq(qb)))
            elif j == 0:
                for ks in range(2):
                    m16(Lq(qb), ONES, Pb(ph,ks), None if (s == 0 and ks == 0) else Lq(qb), (m + C.LAG, 1, 8+ks))
            for u in range(2):
                db = 2*j + u
                for ks in range(2):
                    mm = m16(O(qb,db), Vf(db,ks), Pb(ph,ks), None if (s == 0 and ks == 0) else O(qb,db), (m + C.LAG, 1, 2*u+ks))
                    if u == 0 and ks == 0: Gm[m] = mm
    RT = [f"v{MISC}", f"v{MISC+1}"] if MISC + 2 <= 248 else None
    def epilogue(qb):
        t = RT[qb & 1]; vT = Cm(qb)[0]
        sx = sT[qb & 1]
        V(f"v_accvgpr_read_b32 {t}, {Lq(qb)[0]}", [Lq(qb)[0]], [t])
        if C.SMF:
            V(f"v_accvgpr_read_b32 {vT}, {Lq(qb)[1]}", [Lq(qb)[1]], [vT])
            V(f"v_add_f32_e32 {t}, {vT}, {t}", [t, vT], [t])
        V(f"v_cmp_ngt_f32_e64 {sx}, {sThr}, {t}", [t], ["s_"+sx])
        A(Op(f"s_or_b64 {sFail}, {sFail}, {sx}", "S", reads=["s_"+sx, "sFail"], writes=["sFail"]))
        V(f"v_rcp_f32_e32 {t}, {t}", [t], [t], kind="E")
        wa, wj = (vW, 64) if C.OPAD else (vS, 256)
        def wr(j):
            o = O(qb,2*j)
            return f"ds_write_b128 {wa}, {rng(o)} offset:{j*wj}", o + ["STord"], ["STord"] + ([f"ST{k}" for k in range(4)] if j == 0 else [])
        sel = "op_sel_hi:[1,0]" if (qb & 1) == 0 else "op_sel:[0,1] op_sel_hi:[1,1]"
        for j in range(4):
            o = O(qb,2*j) + O(qb,2*j+1)
            if C.FAT and j > 0:
                tx, r_, w_ = wr(j-1)
                tx += "".join(f"\nv_pk_mul_f32 {rng(o[2*h:2*h+2])}, {rng(o[2*h:2*h+2])}, {rng(RT)} {sel}" for h in range(4))
                A(Op(tx, "D", reads=r_ + o + [t], writes=w_ + o, units=C.WU + 4, tag="fat"))
            for h in range(4):
                if not (C.FAT and j > 0):
                    for r in (2*h, 2*h+1):
                        V(f"v_mul_f32_e32 {o[r]}, {t}, {o[r]}", [t, o[r]], [o[r]])
                V(f"v_cvt_pk_bf16_f32 {o[h]}, {o[2*h]}, {o[2*h+1]}", o[2*h:2*h+2], [o[h]])
            if not C.FAT or j == 3:
                tx, r_, w_ = wr(j)
                A(Op(tx, "D", reads=r_, writes=w_, units=C.WU, tag="dsw"))
        for i in range(4):
            A(Op(f"ds_read_b128 {rng(Qr(qb,i))}, {vL} offset:{i*(4*OROW if C.OPAD else KB)}", "D", reads=["STord"] + [f"ST{k}" for k in range(4)], writes=Qr(qb,i) + ["STord"]))

    Pm = {}
    atP = lambda qb, off=0: (Later(Pm, qb), off)
    def q0dma(qb, e=None, l=None, sp=2):
        base, imm, ps = [(sWS, 0, "ST"), (sWK, 2*KSLOT, "LK2_"), (sWK, 3*KSLOT, "LK3_"), (sWS, 0, "ST")][qb]
        for j in range(4):
            ee = (e[0], e[1] + sp*j) if e else None
            A(Op(f"s_add_u32 m0, {base}, {imm + j*C.KPAD}", "S", reads=[], writes=["m0"], earliest=(ee[0], ee[1]-2) if ee else None))
            off = f" offset:{j*1024}" if j else ""
            A(Op(f"buffer_load_dwordx4 {vD}, {sQ}, {sQo} offen{off}{C.QNT} lds", "G",
                 reads=["m0", "sQo", "nrQ"], writes=[f"{ps}{j}"], earliest=ee, latest=(ee[0], ee[1]+2) if ee else -1))
        if qb < 3: A(Op(f"s_add_u32 {sQo}, {sQo}, 4096", "S", reads=["sQo"], writes=["sQo"]))
    def q0reads(qb, e=None):
        va, imm, ps = [(vS, 0, "ST"), (vQ, 2*KSLOT, "LK2_"), (vQ, 3*KSLOT, "LK3_"), (vS, 0, "ST")][qb]
        for ks in range(4):
            A(Op(f"ds_read_b128 {rng(Qr(qb,ks))}, {va} offset:{imm + ks*256}", "D",
                 reads=[f"{ps}{j}" for j in range(4)] + [va], writes=Qr(qb,ks), earliest=e, latest=e if e else -1))
    RD = C.RD
    if C.QFIRST: q0dma(0)
    for j in range(4): dma(0, "K", j, latest=-1)
    if not C.QFIRST: q0dma(0)
    q0dma(1)
    if C.QFIRST:
        q0reads(0)
        for j in range(4): dma(0, "V", j, latest=-1)
        barrier("K0", Ld("K",0), [], ["rdyK0"], earliest=atP(0, C.KBAR), latest=atP(0, C.KBAR))
        kreads(0)
        q0dma(2, atP(0, C.KBAR + 1))
    else:
        barrier("K0", Ld("K",0), [], ["rdyK0"], latest=-1)
        for j in range(4): dma(0, "V", j, latest=-1)
        kreads(0, latest=-1)
        q0reads(0)
        q0dma(2)
    kvadv(0)
    q0reads(1, atP(1, -RD))
    q0dma(3, atP(1, -RD+1))
    barrier("V0", Ld("V",0), [], ["rdyV0"], earliest=atP(1, C.VBAR))
    vreads(0)
    for j in range(4): dma(1, "K", j, earliest=atP(1, C.VBAR + 2 + 2*j), latest=atP(1, C.VBAR + 2*j + 5))
    q0reads(2, atP(2, -RD))
    for j in range(4): dma(1, "V", j, earliest=atP(2, -RD + 1 + 2*j), latest=atP(2, -RD + 2*j + 4))
    kvadv(1)
    V(f"v_mbcnt_lo_u32_b32 {vQ}, -1, 0", [], [vQ])
    V(f"v_mbcnt_hi_u32_b32 {vQ}, -1, {vQ}", [vQ], [vQ])
    V(f"v_lshlrev_b32_e32 {vQ}, 4, {vQ}", [vQ], [vQ])
    q0reads(3, atP(3, -RD))
    for j in range(4): dma(2, "K", j, earliest=atP(3, -RD + 1 + 2*j), latest=atP(3, -RD + 2*j + 4))
    for j in range(4): dma(2, "V", j, earliest=atT(12, 2+4*j), latest=atT(12, 4*j+10))
    kvadv(2)
    if C.PD == 4:
        k = 0
        for w in "KV":
            for j in range(4):
                dma(3, w, j, earliest=atT(15, 6*k), latest=atT(15, 6*k+10)); k += 1
        kvadv(3)
    events = []
    for p in range(C.NPASS):
        for qb in range(4):
            t = 128*p + C.QT0 + C.QPER*qb
            if qb == 0: events.append((t-4, lambda t=t: qadv(t-4)))
            if p > 0 or qb >= C.DUMMY0: events.append((t + C.ST0, lambda qb=qb, t=t: ostores(qb, t + C.ST0, C.STD)))
            for j in range(4): events.append((t + 2*j, lambda qb=qb, j=j, t=t: qdma(qb, j, t + 2*j)))
            events.append((t + 6 + C.QLAT, lambda qb=qb, t=t: qreads(qb, t + 6 + C.QLAT)))
    def cpf2(t):
        V(f"v_accvgpr_read_b32 {TMP[0]}, a216", [], [TMP[0]], earliest=atT(t-1))
        V(f"v_accvgpr_read_b32 {TMP[1]}, a217", [], [TMP[1]], earliest=atT(t-1))
        A(Op(f"global_load_dword {TMP[2]}, {rng(TMP[0:2])}, off", "G", reads=TMP[0:2], writes=[TMP[2]], earliest=atT(t), latest=atT(t,20)))
    if C.CPF and C.CPF2:
        for p in range(C.NPASS): events.append((128*p + C.CPF2, lambda t=128*p + C.CPF2: cpf2(t)))
    for sig in range(NSTEP - 1):
        k = 0
        for w in "KV":
            for j in range(4):
                t = 16*sig + 13 - C.SH + 2*k if sig else 16 + ((12 - C.SH)*k)//8
                events.append((t, lambda sig=sig, w=w, j=j, t=t: dma(sig + C.PD, w, j, earliest=atT(t), latest=atT(t, 20))))
                k += 1
        events.append((t + 0.5, lambda sig=sig: kvadv(sig + C.PD)))
        if C.FLG and sig >= 1: events.append((16*sig + C.ARR - 0.25, lambda sig=sig: arrive(sig)))
    events.sort(key=lambda e: e[0])
    ei = 0
    def flush(t):
        nonlocal ei
        while ei < len(events) and events[ei][0] < t:
            events[ei][1](); ei += 1
    for sig in range(NSTEP):
        p, s = divmod(sig, 8)
        for qb in range(4):
            if sig == 0: Pm[qb] = prescale(qb, (4*qb - 1, 2))
            phase(sig, qb)
            if s == 7:
                if qb == 0: flush(16*sig + 13)
                if p + 1 < C.NPASS: prescale(qb, (16*sig + 4*qb + 4, 2))
                epilogue(qb)
                if p + 1 == C.NPASS: ostores(qb, None, 0)
        flush(16*sig + 13)
        if s == 6:
            A(Op(f"s_add_u32 {sPass}, {sPass}, 1", "S", reads=["sPass"], writes=["sPass"], earliest=atT(128*p + 80), latest=atT(128*p + 84)))
        if sig + 1 < NSTEP:
            sl = sig % 4
            if sig == 0 and C.SPLITV1:
                barrier("b0", Ld("K",1), ["freeK0"], ["rdyK1"], earliest=atT(12, 2))
                kreads(1)
                flush(12 + C.LAG)
                barrier("b0v", Ld("V",1), ["freeV0"], ["rdyV1"], earliest=atT(12 + C.LAG, 2))
                vreads(1)
                continue
            if C.FLG: check(sig)
            else:
                barrier(f"b{sig}", Ld("K",sig+1) + Ld("V",sig+1), [f"freeK{sl}", f"freeV{sl}"],
                        [f"rdyK{(sig+1)%4}", f"rdyV{(sig+1)%4}"], earliest=atT(16*sig + 12, -2))
            kreads(sig+1); vreads(sig+1)
    out = S.run()

    if C.VIEW:
        a_, b_ = map(int, C.VIEW.split(","))
        code = {"v_exp":"E","v_cvt":"c","v_mul":"m","ds_read_b128":"K","ds_read_b64":"v","ds_write_b128":"W","buffer_load":"L","buffer_store":"T","s_waitcnt":"w","s_nop":"n","s_barrier":"B","s_cbranch":"B","ds_":"f","s_":"s","v_perm":"P","v_rcp":"R"}
        row = ""; prev = None
        slot_of = {Tm[n].n: n for n in Tm}
        for idx in range(S.gapmark[Tm[a_].idx], S.gapmark[Tm[b_].idx]):
            tx, o, k = out[idx]
            if k[0] == "M":
                if prev is not None: row += f"{o.t - prev.t}" if o.t - prev.t != {"M16":16,"MS":16,"M4":8}[prev.kind] else ""
                if idx in slot_of: sys.stderr.write(row + "\n"); row = f"{slot_of[idx]:4d} "
                row += {"M16":" |","MS":" $","M4":" ."}[k]; prev = o
            else:
                ch = next((v for kk, v in code.items() if tx.startswith(kk)), "x")
                if o is not None and o.tag == "fat": ch = "F"
                row += ch
        sys.stderr.write(row + "\n")
    lines = [t for (t,o,k) in out]
    def cut(n): return S.gapmark[Tm[n].idx]
    body = []
    if C.ROLL and C.NPASS == 4:
        X = None
        for x in range(16, 100):
            segs = [lines[cut(128*p + x):cut(128*(p+1) + x)] for p in range(3)]
            if segs[0] == segs[1] == segs[2]: X = x; break
        assert X is not None, "no periodic cut"
        Y = None
        for y in range(127, X, -1):
            if lines[cut(X):cut(y)] == lines[cut(384+X):cut(384+y)]: Y = y; break
        if C.DBG:
            a_, b_ = lines[cut(Y):cut(Y+2)], lines[cut(384+Y):cut(384+Y+2)]
            for u_, v_ in zip(a_, b_): sys.stderr.write(("   " if u_==v_ else "!! ") + u_[:60].ljust(62) + v_[:60] + "\n")
            a_, b_ = lines[cut(X-2):cut(X)], lines[cut(128+X-2):cut(128+X)]
            for u_, v_ in zip(a_, b_): sys.stderr.write(("   " if u_==v_ else "!! ") + u_[:60].ljust(62) + v_[:60] + "\n")
        assert sum(l.startswith(f"s_add_u32 {sPass},") for l in lines[cut(X):cut(Y)]) == 1
        body += lines[:cut(X)]
        body += ["s_branch L_mid", "L_bnd:"]
        body += lines[cut(Y):cut(128+X)]
        body += ["L_mid:"]
        body += lines[cut(X):cut(Y)]
        body += [f"s_cmp_le_i32 {sPass}, 0", "s_cbranch_scc1 L_bnd"]
        body += lines[cut(384+Y):]
        info = f"X={X} Y={Y}"
    else:
        body = lines; info = "linear"
    tp = [S.mf[Tm[128*p].idx].t for p in range(C.NPASS)]
    sys.stderr.write(f"{info} model total {S.total} cyc, pass starts {tp}, stats {dict(S.stats)}\n")

    cpf = """    s_getpc_b64 s[40:41]                        ; pull this kernel's own code into L2 early (one line per lane)
L_pc:
""" + ("    v_lshlrev_b32_e32 v2, 7, v0\n" if C.CPF == 1 else """    s_bfe_u32 s42, s2, 0x30003
    s_lshl_b32 s42, s42, 12
    v_lshrrev_b32_e32 v2, 3, v0
    v_lshl_add_u32 v2, v2, 7, s42
""") + """    v_min_u32_e32 v2, L_end-L_pc, v2
    v_mov_b32_e32 v3, s41
    v_add_co_u32_e32 v2, vcc, s40, v2
    s_nop 1
    v_addc_co_u32_e32 v3, vcc, 0, v3, vcc
    global_load_dword v241, v[2:3], off
    v_accvgpr_write_b32 a216, v2
    v_accvgpr_write_b32 a217, v3
""" if C.CPF else ""
    pre = f"""
    s_cmp_ge_u32 s2, 256
    s_cbranch_scc1 L_end
    s_load_dwordx4 s[4:7], s[0:1], 0
    s_load_dwordx4 s[12:15], s[0:1], 16
{cpf}    v_lshrrev_b32_e32 v1, 6, v0
    v_and_b32_e32 v0, 63, v0
    v_readfirstlane_b32 s34, v1
    s_and_b32 s35, s2, 7                        ; xcd-ish
    s_lshr_b32 s36, s2, 5                       ; group
    s_lshl_b32 s36, s36, 3
    s_add_u32 s36, s36, s35                     ; head0 (0..63)
    s_bfe_u32 s37, s2, 0x20003
    s_lshl_b32 {sKV}, s36, {17 if C.HS else 19}
    s_lshl_b32 {sQo}, s36, {18 if C.HS else 20}
    s_lshl_b32 s37, s37, 16
    s_add_u32 {sQo}, {sQo}, s37
    s_lshl_b32 s37, s34, 14
    s_add_u32 {sQo}, {sQo}, s37
    s_mov_b32 s38, {sQo}
    s_lshl_b32 s37, s34, 12
    s_mov_b32 {sOo}, {sQo}
    s_sub_u32 {sQo}, {sQo}, s37
    s_mov_b32 s39, {sKV}
    s_mul_i32 {sWK}, s34, {4*KB}
    s_add_u32 {sWK}, {sWK}, {KS}
    s_mul_i32 {sWV}, s34, {4*VB}
    s_add_u32 {sWV}, {sWV}, {VS}
    s_mul_i32 {sWS}, s34, {STG}
    s_add_u32 {sWS}, {sWS}, {SS}
    v_bfe_u32 v2, v0, 2, 2
    v_lshrrev_b32_e32 v3, 4, v0
    v_and_b32_e32 v4, 3, v0
    v_and_b32_e32 v5, 15, v0
    v_lshlrev_b32_e32 {vD}, 12, v1
    v_lshl_add_u32 {vD}, v2, 8, {vD}
    v_lshl_add_u32 {vD}, v3, 6, {vD}
    v_lshl_add_u32 {vD}, v4, 4, {vD}
    s_waitcnt lgkmcnt(0)
    s_mov_b32 s8, s6
    s_and_b32 s9, s7, 0xffff
    s_mov_b32 s10, 0x2000000
    s_mov_b32 s11, 0x20000
    s_and_b32 s5, s5, 0xffff
    s_mov_b32 s6, 0x4000000
    s_mov_b32 s7, 0x20000
    s_mov_b32 s16, s14
    s_and_b32 s17, s15, 0xffff
    s_mov_b32 s18, 0
    s_mov_b32 s48, {-(3-C.DUMMY0)*4096}
    s_mov_b32 s19, 0x20000
    s_and_b32 s13, s13, 0xffff
    s_mov_b32 s14, 0x2000000
    s_mov_b32 s15, 0x20000
"""
    pre2 = f"""
    v_mul_u32_u24_e32 {vK}, {KB}, v2
    v_lshl_add_u32 {vK}, v4, 6, {vK}
    v_lshl_add_u32 {vK}, v3, 4, {vK}
    v_mul_u32_u24_e32 {vV}, {VB}, v3
    v_lshl_add_u32 {vV}, v5, 4, {vV}
    v_add_u32_e32 {vV}, {VS}, {vV}
    v_add_u32_e32 {vS}, {sWS}, {vK}
    v_add_u32_e32 {vQ}, {sWK}, {vK}
    v_add_u32_e32 {vK}, {KS}, {vK}
    s_lshl_b32 {sFW}, s34, 8
    s_mov_b32 {sCnt}, 0
    {'s_mov_b32 s46, 100000' if C.RTMAX else ''}
    v_mov_b32_e32 v6, 0
    s_mov_b32 m0, {sFW}
    v_mul_u32_u24_e32 {vW}, {OROW}, v5
    ds_write_addtid_b32 v6
    v_lshl_add_u32 {vW}, v3, 4, {vW}
    v_add_u32_e32 {vW}, {sWS}, {vW}
    {f"v_mul_u32_u24_e32 {vL}, {OROW}, v3" if C.OPAD else f"v_and_b32_e32 {vL}, 0x3ff, {vD}"}
    {f"v_lshl_add_u32 {vL}, v5, 4, {vL}" if C.OPAD else ""}
    v_add_u32_e32 {vL}, {sWS}, {vL}
    s_mov_b32 {sPass}, {1-C.NPASS}
    s_mov_b32 {sThr}, {hex(f2u(C.THR))}
    s_mov_b64 {sFail}, {-1 if C.FORCE_SLOW else 0}
    v_mov_b32_e32 v6, 0x3f803f80
    v_accvgpr_write_b32 {ONES[0]}, v6
    v_accvgpr_write_b32 {ONES[1]}, v6
    v_accvgpr_write_b32 {ONES[2]}, v6
    v_accvgpr_write_b32 {ONES[3]}, v6
    v_and_b32_e32 v6, 1, v0
    v_mul_u32_u24_e32 {vI}, 0xaaaa, v6
    v_add_u32_e32 {vI}, 0x4444, {vI}             ; even rows sum k%4 in (0,1), odd rows k%4 in (2,3)
    v_lshl_or_b32 {vI}, {vI}, 16, {vI}
    v_lshlrev_b32_e32 v6, 4, v6
    v_mov_b32_e32 v7, {hex(chi)}
    v_mov_b32_e32 v8, {hex(clo)}
    v_lshlrev_b32_e32 v7, v6, v7
    v_lshlrev_b32_e32 v8, v6, v8
    v_cmp_gt_u32_e32 vcc, 2, v4
    s_nop 1
    v_cndmask_b32_e32 v9, 0, v7, vcc
    v_cndmask_b32_e32 v10, 0, v8, vcc
    v_sub_u32_e32 v7, v7, v9
    v_sub_u32_e32 v8, v8, v10
    v_accvgpr_write_b32 {AHI[0]}, v9
    v_accvgpr_write_b32 {AHI[1]}, v7
    v_accvgpr_write_b32 {ALO[0]}, v10
    v_accvgpr_write_b32 {ALO[1]}, v8
    s_waitcnt lgkmcnt(0)
    v_accvgpr_write_b32 {Lq(0)[2]}, 0
    v_accvgpr_write_b32 {Lq(0)[3]}, 0
    v_accvgpr_write_b32 {Lq(1)[2]}, 0
    v_accvgpr_write_b32 {Lq(1)[3]}, 0
    v_accvgpr_write_b32 {Lq(2)[2]}, 0
    v_accvgpr_write_b32 {Lq(2)[3]}, 0
    v_accvgpr_write_b32 {Lq(3)[2]}, 0
    v_accvgpr_write_b32 {Lq(3)[3]}, 0
"""
    fi = next(i for i,l in enumerate(body) if l.startswith("s_waitcnt"))
    body = body[:fi] + [pre2.strip("\n")] + body[fi:]

    retry = []
    nb = []
    for l in body:
        if l.endswith("@CHK"):
            k = len(retry)
            nb += [l.replace("@CHK", f"L_rt{k}"), f"L_bk{k}:"]
            retry.append(f"L_rt{k}:\n" + ("    s_sub_u32 s46, s46, 1\n    s_cbranch_scc1 L_end\n" if C.RTMAX else "") + f"    ds_read_b32 {vF}, {vQ}\n    s_waitcnt lgkmcnt(0)\n    v_cmp_gt_u32_e32 vcc, {sCnt}, {vF}\n    s_nop 1\n    s_cbranch_vccnz L_rt{k}\n    s_branch L_bk{k}\n")
        else: nb.append(l)
    body = nb
    if C.PADN:
        nb = []; k = 0; since = 0
        for i_, l in enumerate(body):
            nb.append(l); since += 1
            if i_ > fi + 1 and since >= C.PADN and l.startswith("v_mfma_f32_16") and i_+1 < len(body) and not body[i_+1].startswith("s_") and not body[i_+1].endswith(":"):
                nb += [f"L_pad{k}:", f"s_cbranch_execz L_pad{k+1}"]; k += 1; since = 0
        nb = nb[:fi+1] + ["s_mov_b64 exec, 0", "s_branch L_pad0", f"L_pad{k}:", "s_mov_b64 exec, -1"] + nb[fi+1:]
        body = nb
        sys.stderr.write(f"pads {k}\n")
    bt = [0] + [o.t for (t_,o,k_) in out if k_ == "B"] + [S.total]
    sys.stderr.write("model dcyc " + " ".join(str(b-a) for a,b in zip(bt, bt[1:])) + "\n")
    if C.DROP.strip():
        import re as _re
        pat = _re.compile(C.DROP.strip())
        i0 = body.index('L_bnd:') if C.DROPL else 0
        body = body[:i0] + [l for l in body[i0:] if not pat.search(l)]
    if C.STAMP:
        stamp = ["v_mov_b32_dpp v243, v243 wave_shr:1 row_mask:0xf bank_mask:0xf",
                 "s_lshr_b32 s50, s50, 2", "s_pack_ll_b32_b16 s50, s50, s52",
                 "v_writelane_b32 v243, s50, 0",
                 "s_memtime s[50:51]", "s_memrealtime s[52:53]"]
        nb = []
        for l in body:
            if l == "s_barrier": nbar_ = locals().get("nbar_", 0) + 1
            if not (l == "s_barrier" and C.NOBAR and nbar_ > 3): nb.append(l)
            if l == "s_barrier" or l.startswith("L_bk"): nb += stamp
        w0 = ["s_waitcnt lgkmcnt(0)"]
        if C.FINE:
            nb2 = w0 + stamp; cntw = 0
            for l in nb:
                if l.startswith("s_waitcnt vmcnt") and cntw < 12:
                    cntw += 1
                    if cntw == 1: nb2 += w0 + stamp
                    nb2 += [l] + w0 + stamp
                else: nb2.append(l)
            nb = nb2
        nb += w0 + stamp + ["s_waitcnt vmcnt(0)"] + w0 + stamp + w0 + stamp + w0
        nb += ["s_load_dwordx2 s[56:57], s[0:1], 40", "s_waitcnt lgkmcnt(0)", "s_and_b32 s57, s57, 0xffff",
               "s_mov_b32 s58, 0x1000000", "s_mov_b32 s59, 0x20000",
               "s_lshl_b32 s54, s2, 2", "s_add_u32 s54, s54, s34", "s_lshl_b32 s54, s54, 8",
               "v_mbcnt_lo_u32_b32 v0, -1, 0", "v_mbcnt_hi_u32_b32 v0, -1, v0", "v_lshlrev_b32_e32 v0, 2, v0",
               "buffer_store_dword v243, v0, s[56:59], s54 offen", "s_waitcnt vmcnt(0)"]
        body = nb
        pre = pre.replace("    s_load_dwordx4 s[4:7], s[0:1], 0\n", "    s_memtime s[50:51]\n    s_memrealtime s[52:53]\n    v_mov_b32_e32 v243, 0\n    s_load_dwordx4 s[4:7], s[0:1], 0\n")
    if C.SPIN >= 0:
        nb = []
        for l in body:
            nb.append(l)
            if l == "s_barrier":
                nb += ["s_add_u32 s60, s60, 1", f"s_cmp_lg_u32 s60, {C.SPIN}", "s_cbranch_scc1 1f".replace("1f", f"L_sp{len(nb)}"), "s_memrealtime s[52:53]", f"L_sp{len(nb)}:"]
        nb += ["s_waitcnt vmcnt(0)"]
        if C.SPIN == 99: nb += ["s_memrealtime s[52:53]"]
        nb += ["s_waitcnt lgkmcnt(0)", "s_sub_u32 s54, s52, s50", f"s_mul_i32 s54, s54, {C.SPINK}", f"s_add_u32 s54, s54, {C.SPINB}",
               "L_spin:", "s_memrealtime s[52:53]", "s_waitcnt lgkmcnt(0)", "s_sub_u32 s55, s52, s50", "s_cmp_lt_u32 s55, s54", "s_cbranch_scc1 L_spin"]
        body = nb
        pre = pre.replace("    s_load_dwordx4 s[4:7], s[0:1], 0\n", "    s_memrealtime s[50:51]\n    s_mov_b32 s60, 0\n    s_mov_b32 s52, 0\n    s_load_dwordx4 s[4:7], s[0:1], 0\n")
    from slow import slow_path
    slow = slow_path(locals())
    hdr = open("standalone__mha_softmax__near_ridge.s.ref").read().split("; Override launch")[0]
    txt = hdr + f"; @launch grid=(256,1,1) block=(256,1,1) lds={LDS}\n"
    txt += f""".amdgcn_target "amdgcn-amd-amdhsa--gfx950"
.text
.globl {KNAME}
.p2align 8
.type {KNAME},@function
{KNAME}:"""
    txt += pre
    for l in body:
        for x in l.split("\n"):
            txt += (x if x.endswith(":") or x.startswith("    ") else "    " + x) + "\n"
    txt += slow
    txt += f"""L_end:
    s_endpgm
{"".join(retry)}
.section .rodata,"a"
.p2align 6
.amdhsa_kernel {KNAME}
  .amdhsa_next_free_vgpr 512
  .amdhsa_next_free_sgpr 64
  .amdhsa_accum_offset 256
  .amdhsa_group_segment_fixed_size 0
  .amdhsa_kernarg_size 48
  .amdhsa_user_sgpr_count 2
  .amdhsa_user_sgpr_kernarg_segment_ptr 1
  .amdhsa_system_sgpr_workgroup_id_x 1
  .amdhsa_float_denorm_mode_32 3
.end_amdhsa_kernel
"""
    return txt

if __name__ == "__main__":
    cfg = Cfg()
    outp = sys.argv[1]
    for a in sys.argv[2:]:
        k, v = a.split("=", 1)
        old = getattr(cfg, k)
        setattr(cfg, k, (" " + v if v else "") if isinstance(old, str) else type(old)(eval(v)))
    open(outp, "w").write(generate(cfg))
```
